```python
import torch

def _softmax(x, axis=-1):
    return torch.softmax(x, dim=axis)
def _gelu(x):
    return torch.nn.functional.gelu(x, approximate="tanh")
def _silu(x):
    return torch.nn.functional.silu(x)
def _sigmoid(x):
    return torch.sigmoid(x)
def _layernorm(x, axis=-1, eps=1e-5):
    m = x.mean(dim=axis, keepdim=True)
    v = x.var(dim=axis, keepdim=True, unbiased=False)
    return (x - m) / torch.sqrt(v + eps)
def _scatter_add(tgt, idx, src, axis=0):
    return tgt.clone().index_add_(axis, idx, src)
def _segment_sum(src, seg, n):
    out = torch.zeros((n,) + src.shape[1:], dtype=src.dtype)
    return out.index_add_(0, seg, src)
def _pad(x, pw):
    flat = tuple(v for pair in reversed(pw) for v in pair)
    return torch.nn.functional.pad(x, flat)

kernel_name = 'standalone__grouped__vision'

def setup_inputs():

    _w = (lambda a: (lambda t: t.to(torch.bfloat16) if t.is_floating_point() else t)(torch.as_tensor(a)))
    H = W = 224
    G = 4
    Cg = max(96 // G, 2)
    C = G * Cg
    k = 5
    scale = 1.0 / (k * Cg ** 0.5)
    return {
        "x": _w((lambda *s: torch.randn(*s, dtype=torch.bfloat16) * 0.05)(1, H, W, C)),
        "w": _w((lambda *s: torch.randn(*s, dtype=torch.bfloat16) * 0.05)(k, k, G, Cg, Cg) * scale),
    }

def reference(x, w):
    B, H, W, C = x.shape
    k = w.shape[0]
    G = w.shape[2]
    Cg = C // G
    pad = k // 2
    xp = _pad(x, ((0,0),(pad,pad),(pad,pad),(0,0)))
    xg = xp.reshape(B, H + 2 * pad, W + 2 * pad, G, Cg)
    out = torch.zeros_like(x).reshape(B, H, W, G, Cg)
    for i in range(k):
        for j in range(k):
            out = out + torch.einsum('bhwgc,gcd->bhwgd', xg[:, i:i+H, j:j+W, :, :], w[i, j])
    return out.reshape(B, H, W, C)
```

```python
import sys
DIAG = '--diag' in sys.argv
out = []
def e(s): out.append('    ' + s)
def lab(s): out.append(s + ':')

XROW = 43008; XBYTES = 224*XROW; WBYTES = 115200
WI = 23040
XB = 115200
RS = 3840
NSLOT = 12
OOR = 0x40000
LDS = XB + NSLOT*RS

sX, sW, sO = 12, 16, 20
sROW0, sCOL0, sH13, sWAVE, sG, sT0, sT1, sOB = 24, 25, 26, 27, 28, 29, 30, 31
sSTAMP = 40
nstamp = [0]
def stamp():
    if DIAG:
        e(f's_memtime s[{sSTAMP+2*nstamp[0]}:{sSTAMP+2*nstamp[0]+1}]')
    nstamp[0] += 1

vLANE=1; vQ=2; vP=3; vXD=4; vWD=5; vT0=6; vT1=7; vT2=8; vT3=9
vXA=[10,11,12,13]
vWA0=14; vWA1=15; vWA0z=16; vWA1z=17
vST=18; vST2=19; vLW=20
vCV=24
vLATE=32
vXF=[44,60]
vACC=76
vWF=128

hdr = f'''; grouped 5x5 conv, NHWC bf16, 224x224x96, G=4.  generated by dev/gen1.py
; @launch grid=(252,1,1) block=(512,1,1) lds={LDS}
.amdgcn_target "amdgcn-amd-amdhsa--gfx950"
.text
.globl standalone__grouped__vision_kernel
.p2align 8
.type standalone__grouped__vision_kernel,@function
standalone__grouped__vision_kernel:'''

if DIAG:
    e('s_memrealtime s[36:37]')
stamp()
e('s_cmp_ge_u32 s2, 252')
e('s_cbranch_scc1 L_end')
e('s_load_dwordx4 s[4:7], s[0:1], 0')
e('s_load_dwordx2 s[8:9], s[0:1], 16')
if DIAG: e('s_load_dwordx2 s[10:11], s[0:1], 32')
e('s_and_b32 s3, s2, 7')
e(f's_lshr_b32 s{sT0}, s2, 3')
e(f's_lshl_b32 s{sT1}, s3, 5')
e(f's_add_u32 s{sT0}, s{sT0}, s{sT1}')
e(f's_max_u32 s{sT1}, s3, 4')
e(f's_sub_u32 s{sT1}, s{sT1}, 4')
e(f's_sub_u32 s{sT0}, s{sT0}, s{sT1}')
e(f's_mul_i32 s{sT1}, s{sT0}, 4682')
e(f's_lshr_b32 s{sT1}, s{sT1}, 16')
e(f's_mul_i32 s3, s{sT1}, 14')
e(f's_sub_u32 s{sCOL0}, s{sT0}, s3')
e(f's_lshl_b32 s{sCOL0}, s{sCOL0}, 4')
e(f's_mul_i32 s{sROW0}, s{sT1}, 12')
e(f's_min_u32 s3, s{sT1}, 8')
e(f's_add_u32 s{sROW0}, s{sROW0}, s3')
e(f's_mov_b32 s{sH13}, s{sT1}')
e(f'v_lshrrev_b32 v{vT0}, 6, v0')
e(f'v_and_b32 v{vLANE}, 63, v0')
e(f'v_readfirstlane_b32 s{sWAVE}, v{vT0}')
e(f'v_lshrrev_b32 v{vQ}, 4, v{vLANE}')
e(f'v_and_b32 v{vP}, 15, v{vLANE}')
e(f's_and_b32 s{sG}, s{sWAVE}, 3')
e(f'v_mul_u32_u24 v{vT0}, 43, v{vLANE}')
e(f'v_lshrrev_b32 v{vT0}, 9, v{vT0}')
e(f'v_mul_u32_u24 v{vT1}, 12, v{vT0}')
e(f'v_sub_u32 v{vT1}, v{vLANE}, v{vT1}')
e(f's_mul_i32 s{sT0}, s{sG}, 5')
e(f'v_add_u32 v{vT0}, s{sT0}, v{vT0}')
e(f'v_bfe_u32 v{vT2}, v{vT0}, 2, 2')
e(f'v_xor_b32 v{vT1}, v{vT1}, v{vT2}')
e(f's_sub_u32 s{sT0}, s{sCOL0}, 2')
e(f'v_add_u32 v{vT0}, s{sT0}, v{vT0}')
e(f'v_mul_u32_u24 v{vT2}, 192, v{vT0}')
e(f'v_lshl_add_u32 v{vT2}, v{vT1}, 4, v{vT2}')
e(f'v_mov_b32 v{vT3}, 0x80000000')
e(f'v_cmp_gt_u32 vcc, 224, v{vT0}')
e(f's_lshr_b32 s{sT0}, s{sWAVE}, 2')
e(f's_add_u32 s{sT0}, s{sT0}, s{sROW0}')
e(f's_sub_u32 s{sT0}, s{sT0}, 2')
e(f's_mul_i32 s{sT0}, s{sT0}, {XROW}')
e(f'v_cndmask_b32 v{vXD}, v{vT3}, v{vT2}, vcc')
e(f'v_add_u32 v{vXD}, s{sT0}, v{vXD}')
e(f's_mul_i32 s{sT0}, s{sWAVE}, 2880')
e(f'v_lshlrev_b32 v{vWD}, 4, v{vLANE}')
e(f'v_add_u32 v{vWD}, s{sT0}, v{vWD}')
e(f's_mul_i32 s{sT1}, s{sG}, 3')
e(f'v_add_u32 v{vT0}, v{vP}, v{vQ}')
e(f'v_bfe_u32 v{vT1}, v{vT0}, 2, 2')
e(f'v_mul_u32_u24 v{vT0}, 192, v{vT0}')
e(f'v_add_u32 v{vT0}, {XB}, v{vT0}')
for k in range(3):
    e(f's_add_u32 s3, s{sT1}, {k}')
    e(f'v_xor_b32 v{vT2}, s3, v{vT1}')
    e(f'v_lshl_add_u32 v{vXA[k]}, v{vT2}, 4, v{vT0}')
e(f'v_add_u32 v{vT0}, 4, v{vP}')
e(f'v_bfe_u32 v{vT1}, v{vT0}, 2, 2')
e(f'v_mul_u32_u24 v{vT0}, 192, v{vT0}')
e(f'v_add_u32 v{vT0}, {XB}, v{vT0}')
e(f'v_add_u32 v{vT2}, s{sT1}, v{vQ}')
e(f'v_xor_b32 v{vT2}, v{vT2}, v{vT1}')
e(f'v_lshl_add_u32 v{vXA[3]}, v{vT2}, 4, v{vT0}')
e(f'v_cmp_eq_u32 vcc, 3, v{vQ}')
e(f'v_mov_b32 v{vT3}, {OOR}')
e(f'v_bfe_u32 v{vT0}, v{vLANE}, 2, 2')
e(f'v_cndmask_b32 v{vXA[3]}, v{vXA[3]}, v{vT3}, vcc')
e(f'v_mul_u32_u24 v{vT0}, 48, v{vT0}')
e(f's_mul_i32 s{sT0}, s{sG}, 1152')
e(f'v_add_u32 v{vT0}, s{sT0}, v{vT0}')
e(f'v_mul_u32_u24 v{vT1}, 4608, v{vQ}')
e(f'v_add_u32 v{vWA0}, v{vT0}, v{vT1}')
e(f'v_min_u32 v{vT1}, 2, v{vQ}')
e(f'v_mul_u32_u24 v{vT1}, 384, v{vT1}')
e(f'v_add_u32 v{vWA1}, v{vT0}, v{vT1}')
e(f'v_add_u32 v{vWA1}, {4*4608}, v{vWA1}')
e(f's_lshr_b32 s{sT0}, s{sWAVE}, 2')
e(f's_mul_i32 s{sT0}, s{sT0}, {RS}')
e(f's_mul_i32 s{sT1}, s{sG}, 960')
e(f's_add_u32 s{sT0}, s{sT0}, s{sT1}')
e(f's_add_u32 s{sT0}, s{sT0}, {XB}')
e(f'v_lshlrev_b32 v{vLW}, 4, v{vLANE}')
e(f'v_add_u32 v{vLW}, s{sT0}, v{vLW}')
e(f'v_cmp_gt_u32 vcc, 60, v{vLANE}')
e(f's_mov_b32 s34, s{sT0}')
e(f's_mul_i32 s35, s{sWAVE}, 2880')
e(f'v_cndmask_b32 v{vLW}, v{vT3}, v{vLW}, vcc')
e(f's_mul_i32 s{sOB}, s{sROW0}, {XROW}')
e(f's_mul_i32 s3, s{sCOL0}, 192')
e(f's_add_u32 s{sOB}, s{sOB}, s3')
e(f's_mul_i32 s3, s{sG}, 48')
e(f's_add_u32 s{sOB}, s{sOB}, s3')
e(f'v_mul_u32_u24 v{vST}, 192, v{vP}')
e(f'v_add_u32 v{vST}, s{sOB}, v{vST}')
e('s_waitcnt lgkmcnt(0)')
stamp()
for (s, p, n) in ((sX,4,XBYTES),(sW,6,WBYTES),(sO,8,XBYTES)):
    e(f's_mov_b32 s{s}, s{p}')
    e(f's_and_b32 s{s+1}, s{p+1}, 0xffff')
    e(f's_mov_b32 s{s+2}, {n}')
    e(f's_mov_b32 s{s+3}, 0x20000')
e('s_mov_b32 exec_hi, 0x0fffffff')
def dma_x(n):
    e(f's_add_u32 m0, s34, {2*n*RS}')
    e('s_nop 0')
    e(f'buffer_load_dwordx4 v{vXD}, s[{sX}:{sX+3}], 0 offen lds')
    e(f'v_add_u32 v{vXD}, {2*XROW}, v{vXD}')
def dma_w(i):
    e(f's_add_u32 m0, s35, {i*WI}')
    e('s_nop 0')
    for t in range(3):
        e(f'buffer_load_dwordx4 v{vWD}, s[{sW}:{sW+3}], 0 offen offset:{960*t} lds')
    if i < 4: e(f'v_add_u32 v{vWD}, {WI}, v{vWD}')
order = ['x0','w0','x1','w1','w2','x2','w3','w4','x3','x4','x5','r0','r1','r2']
cnt = {}
n = 0
for o in order:
    k = int(o[1])
    if o[0]=='x': dma_x(k); n+=1
    elif o[0]=='w': dma_w(k); n+=3
    else:
        e(f'buffer_load_dwordx4 v[{vLATE+4*k}:{vLATE+4*k+3}], v{vXD}, s[{sX}:{sX+3}], 0 offen')
        if k<2: e(f'v_add_u32 v{vXD}, {2*XROW}, v{vXD}')
        n+=1
    cnt[o]=n
NV = n
e('s_mov_b64 exec, -1')
stamp()
e(f's_cmp_ge_u32 s{sWAVE}, 4')
e('s_cbranch_scc1 L_hi')

def gen_role(hi):
    st0 = nstamp[0]
    nst = [0]
    if not hi:
        e(f'v_and_b32 v{vT0}, 3, v{vLANE}')
        e(f'v_lshl_add_u32 v{vWA0}, v{vT0}, 3, v{vWA0}')
        e(f'v_lshl_add_u32 v{vWA1}, v{vT0}, 3, v{vWA1}')
        e(f'v_lshl_add_u32 v{vST2}, v{vQ}, 3, v{vST}')
        e(f'v_and_b32 v{vT0}, 1, v{vQ}')
        e(f'v_mul_u32_u24 v{vT0}, {XROW}, v{vT0}')
        e(f'v_lshrrev_b32 v{vT1}, 1, v{vQ}')
        e(f'v_lshl_add_u32 v{vT0}, v{vT1}, 4, v{vT0}')
        e(f'v_add_u32 v{vST}, v{vST}, v{vT0}')
    else:
        e(f'v_and_b32 v{vT0}, 1, v{vLANE}')
        e(f'v_lshlrev_b32 v{vT0}, 3, v{vT0}')
        e(f'v_add_u32 v{vT0}, 32, v{vT0}')
        e(f'v_bfe_u32 v{vT1}, v{vLANE}, 1, 1')
        e(f'v_mul_u32_u24 v{vT2}, {WI}, v{vT1}')
        e(f'v_sub_u32 v{vT0}, v{vT0}, v{vT2}')
        e(f'v_add_u32 v{vWA0}, v{vWA0}, v{vT0}')
        e(f'v_add_u32 v{vWA1}, v{vWA1}, v{vT0}')
        e(f'v_cmp_eq_u32 vcc, 0, v{vT1}')
        e(f'v_add_u32 v{vWA0z}, {5*WI}, v{vWA0}')
        e(f'v_add_u32 v{vWA1z}, {5*WI}, v{vWA1}')
        e(f'v_cndmask_b32 v{vWA0z}, v{vWA0z}, v{vT3}, vcc')
        e(f'v_cndmask_b32 v{vWA1z}, v{vWA1z}, v{vT3}, vcc')
        e(f'v_and_b32 v{vT0}, 1, v{vQ}')
        e(f'v_lshl_add_u32 v{vST}, v{vT0}, 3, v{vST}')
        e(f'v_add_u32 v{vST}, 32, v{vST}')
        e(f'v_lshrrev_b32 v{vT1}, 1, v{vQ}')
        e(f'v_lshlrev_b32 v{vT2}, 31, v{vT1}')
        e(f'v_add_u32 v{vST2}, v{vST}, v{vT2}')
        e(f'v_mul_u32_u24 v{vT1}, {XROW}, v{vT1}')
        e(f'v_add_u32 v{vST}, v{vST}, v{vT1}')
    def wf(i,k): return vWF + (i*4+k)*4
    def read_w(i):
        for k in range(4):
            for h in range(2):
                if hi and i==5:
                    a = vWA0z if k<3 else vWA1z; off = (k*384 if k<3 else 0) + h*192
                else:
                    a = vWA0 if k<3 else vWA1; off = (i%3)*WI + (k*384 if k<3 else 0) + h*192
                r = wf(i,k)+2*h
                e(f'ds_read_b64_tr_b16 v[{r}:{r+1}], v{a} offset:{off}')
        if i==2:
            e(f'v_add_u32 v{vWA0}, {3*WI}, v{vWA0}')
            e(f'v_add_u32 v{vWA1}, {3*WI}, v{vWA1}')
    def read_x(r):
        for k in range(4):
            d = vXF[r&1]+4*k
            e(f'ds_read_b128 v[{d}:{d+3}], v{vXA[k]} offset:{(r%NSLOT)*RS}')
    def mfmas(r):
        L=[]
        for k in range(4):
            b = vXF[r&1]+4*k
            if not hi:
                for i in range(4,-1,-1):
                    o = r-i
                    if 0<=o<=12:
                        a=wf(i,k); c=vACC+4*o
                        src = '0' if (i==0 and k==0) else f'v[{c}:{c+3}]'
                        L.append(f'v_mfma_f32_16x16x32_bf16 v[{c}:{c+3}], v[{a}:{a+3}], v[{b}:{b+3}], {src}')
            else:
                for u in range(7):
                    i = r-2*u
                    if 0<=i<=5:
                        a=wf(i,k); c=vACC+4*u
                        src = '0' if (i==0 and k==0) else f'v[{c}:{c+3}]'
                        L.append(f'v_mfma_f32_16x16x32_bf16 v[{c}:{c+3}], v[{a}:{a+3}], v[{b}:{b+3}], {src}')
        return L
    def store_pair(u):
        L=[]
        t = vCV + 4*(u&1)
        if not hi:
            c0=vACC+8*u; c1=c0+4
            L.append(f'v_cvt_pk_bf16_f32 v{t}, v{c0}, v{c0+1}')
            L.append(f'v_cvt_pk_bf16_f32 v{t+1}, v{c0+2}, v{c0+3}')
            L.append(f'v_cvt_pk_bf16_f32 v{t+2}, v{c1}, v{c1+1}')
            L.append(f'v_cvt_pk_bf16_f32 v{t+3}, v{c1+2}, v{c1+3}')
            L.append(f's_mov_b32 s3, {2*u*XROW}')
            L.append('s_nop 0')
            L.append(f'v_permlane16_swap_b32 v{t}, v{t+2}')
            L.append(f'v_permlane16_swap_b32 v{t+1}, v{t+3}')
            L.append(f'buffer_store_dwordx4 v[{t}:{t+3}], v{vST}, s[{sO}:{sO+3}], s3 offen')
        else:
            c0=vACC+4*u
            L.append(f'v_cvt_pk_bf16_f32 v{t}, v{c0}, v{c0+1}')
            L.append(f'v_cvt_pk_bf16_f32 v{t+1}, v{c0+2}, v{c0+3}')
            L.append(f's_mov_b32 s3, {2*u*XROW}')
            L.append(f'buffer_store_dwordx2 v[{t}:{t+1}], v{vST}, s[{sO}:{sO+3}], s3 offen')
        nst[0]+=1
        return L
    def sync(tag):
        e(f's_waitcnt vmcnt({NV-cnt[tag]+nst[0]})')
        e('s_barrier')
        stamp()
    need = {0:'w0',1:'w1',2:'w2',3:'w3',4:'w4',6:'x3',8:'r2'}
    sync('w0'); read_w(0); read_x(0)
    for r in range(17):
        e('s_waitcnt lgkmcnt(0)')
        nx = r+1
        if nx in need:
            sync(need[nx])
            if nx==8:
                for k in range(3):
                    e(f'ds_write_b128 v{vLW}, v[{vLATE+4*k}:{vLATE+4*k+3}] offset:{2*k*RS}')
        if nx==12:
            e('s_barrier'); stamp()
        if nx<=16:
            if nx<=4: read_w(nx)
            if hi and nx==5: read_w(5)
            read_x(nx)
        M = mfmas(r)
        S = []
        if r>=6 and r%2==0: S = store_pair((r-6)//2)
        if r==16:
            e('s_nop 7')
            for s in S: e(s)
            e(f's_cmp_ge_u32 s{sH13}, 8')
            e(f's_cbranch_scc1 L_fin{int(hi)}')
            for m in M: e(m)
        else:
            pos = 8
            seq = M[:pos]
            rest = M[pos:]
            if len(seq)<8 and S: seq = seq + ['s_nop 7']
            i=0
            for s in S:
                seq.append(s)
                if i < len(rest) and not s.startswith('s_') and not 'cvt' in s:
                    seq.append(rest[i]); i+=1
            seq += rest[i:]
            for m in seq: e(m)
    e('s_nop 7')
    t = vCV
    c0 = vACC+4*(12 if not hi else 6)
    e(f'v_cvt_pk_bf16_f32 v{t}, v{c0}, v{c0+1}')
    e(f'v_cvt_pk_bf16_f32 v{t+1}, v{c0+2}, v{c0+3}')
    e(f's_mov_b32 s3, {12*XROW}')
    e(f'buffer_store_dwordx2 v[{t}:{t+1}], v{vST2}, s[{sO}:{sO+3}], s3 offen')
    lab(f'L_fin{int(hi)}')
    stamp()
    if DIAG:
        e('s_waitcnt vmcnt(0)')
        stamp()
        e('s_memrealtime s[38:39]')
        e('s_branch L_diag')
    else:
        e('s_endpgm')
    n_end = nstamp[0]
    nstamp[0] = st0
    return n_end

n_end = gen_role(False)
lab('L_hi')
gen_role(True)
if DIAG:
    lab('L_diag')
    e('s_getreg_b32 s3, hwreg(HW_REG_XCC_ID)')
    e('s_getreg_b32 s33, hwreg(HW_REG_HW_ID)')
    e('s_waitcnt lgkmcnt(0)')
    e('s_mov_b32 s12, s10'); e('s_and_b32 s13, s11, 0xffff'); e('s_mov_b32 s14, 0x100000'); e('s_mov_b32 s15, 0x20000')
    e(f's_lshl_b32 s4, s2, 3'); e(f's_add_u32 s4, s4, s{sWAVE}'); e('s_lshl_b32 s4, s4, 8')
    regs = [3,33,36,37,38,39] + list(range(sSTAMP, sSTAMP+2*n_end))
    e('v_mov_b32 v2, 0')
    for j,rg in enumerate(regs):
        e(f'v_writelane_b32 v2, s{rg}, {j}')
    e('v_lshlrev_b32 v3, 2, v1')
    e('s_nop 4')
    e('buffer_store_dword v2, v3, s[12:15], s4 offen')
    e('s_waitcnt vmcnt(0)')
lab('L_end')
e('s_endpgm')
tail = '''.section .rodata,"a"
.p2align 6
.amdhsa_kernel standalone__grouped__vision_kernel
  .amdhsa_next_free_vgpr 224
  .amdhsa_next_free_sgpr 96
  .amdhsa_accum_offset 224
  .amdhsa_group_segment_fixed_size 0
  .amdhsa_kernarg_size 40
  .amdhsa_user_sgpr_count 2
  .amdhsa_user_sgpr_kernarg_segment_ptr 1
  .amdhsa_system_sgpr_workgroup_id_x 1
.end_amdhsa_kernel
'''
print(hdr); print('\n'.join(out)); print(tail)
```

```python
import sys, argparse
ap = argparse.ArgumentParser()
ap.add_argument('--diag', action='store_true')
ap.add_argument('--st', default='')
ap.add_argument('--ld', default='')
ap.add_argument('--look', type=int, default=9)
ap.add_argument('--stream', default='x0 w0 x1 w1 x2 w2 x3 w3 x4 w4 x5 x6 x7 x8 x9 x10 x11 x12 x13 x14 x15 x16')
A = ap.parse_args()
DIAG = A.diag
out = []
def e(s): out.append('    ' + s)
def lab(s): out.append(s + ':')

XROW = 43008; XBYTES = 224*XROW; WBYTES = 115200
WI = 23040; RS = 3840
XB = 4*WI
SB = WI
SPX = 208; SROW = 16*SPX
OOR = 0x40000
LDS = XB + 17*RS
XSH = 2*XROW + 384

sX, sW, sO = 12, 16, 20
sROW0, sCOL0, sSEG, sWAVE, sG, sT0, sT1, sT2 = 24, 25, 26, 27, 28, 29, 30, 31
sK = 32; sSOF = 33; sGROW = 34; sOB = 35
sSTAMP = 40
nstamp = [0]
def stamp():
    if DIAG:
        e(f's_memtime s[{sSTAMP+2*nstamp[0]}:{sSTAMP+2*nstamp[0]+1}]')
    nstamp[0] += 1
def finish():
    if DIAG:
        stamp()
        e('s_waitcnt vmcnt(0)')
        stamp()
        for z in range(nstamp[0], 28): e(f's_mov_b64 s[{sSTAMP+2*z}:{sSTAMP+2*z+1}], 0')
        e('s_memrealtime s[38:39]')
        e('s_branch L_diag')
    else:
        e('s_endpgm')

hdr = f'''; grouped 5x5 conv, NHWC bf16, 224x224x96, G=4.  generated by dev/gen2.py
; @launch grid=(252,1,1) block=(320,1,1) lds={LDS}
.amdgcn_target "amdgcn-amd-amdhsa--gfx950"
.text
.p2align 12
.globl standalone__grouped__vision_kernel
.p2align 8
.type standalone__grouped__vision_kernel,@function
standalone__grouped__vision_kernel:'''

if DIAG: e('s_memrealtime s[36:37]')
stamp()
e('s_load_dwordx4 s[4:7], s[0:1], 0')
e('s_load_dwordx2 s[8:9], s[0:1], 16')
if DIAG: e('s_load_dwordx2 s[10:11], s[0:1], 32')
e('v_lshrrev_b32 v2, 6, v0')
e('v_and_b32 v1, 63, v0')
e(f'v_readfirstlane_b32 s{sWAVE}, v2')
e('s_cmp_ge_u32 s2, 252')
e('s_cbranch_scc1 L_end')
e('s_and_b32 s3, s2, 7')
e(f's_lshr_b32 s{sK}, s2, 3')
e(f's_lshl_b32 s{sT1}, s3, 5')
e(f's_add_u32 s{sT0}, s{sK}, s{sT1}')
e(f's_max_u32 s{sT1}, s3, 4')
e(f's_sub_u32 s{sT1}, s{sT1}, 4')
e(f's_sub_u32 s{sT0}, s{sT0}, s{sT1}')
e(f's_mul_i32 s{sSEG}, s{sT0}, 4682')
e(f's_lshr_b32 s{sSEG}, s{sSEG}, 16')
e(f's_cmp_lg_u32 s{sWAVE}, 0')
e('s_cbranch_scc1 L_rolecomp')
st_common = nstamp[0]

lab('L_rolehelp')
e('s_getpc_b64 s[22:23]')
lab('L_pc')
e(f's_and_b32 s{sT1}, s{sK}, 7')
e(f's_lshl_b32 s{sT1}, s{sT1}, 11')
e(f'v_lshl_add_u32 v3, v1, 7, s{sT1}')
e('v_min_u32 v3, L_end-L_pc, v3')
e('s_mov_b64 exec, 0xffff')
e('global_load_dword v4, v3, s[22:23]')
e('s_mov_b64 exec, -1')
e(f's_mul_i32 s3, s{sSEG}, 14')
e(f's_sub_u32 s{sCOL0}, s{sT0}, s3')
e(f's_lshl_b32 s{sCOL0}, s{sCOL0}, 4')
e(f's_mul_i32 s{sROW0}, s{sSEG}, 12')
e(f's_min_u32 s3, s{sSEG}, 8')
e(f's_add_u32 s{sROW0}, s{sROW0}, s3')
vL16, vWP = 5, 6
vXD = [8, 9, 10, 11]
vRA = [12, 13, 14]
vSD = 16
e(f'v_lshlrev_b32 v{vL16}, 4, v1')
e(f's_lshl_b32 s{sT1}, s{sK}, 12')
e(f'v_lshl_add_u32 v{vWP}, v1, 7, s{sT1}')
e('v_mul_u32_u24 v2, 43, v1')
e('v_lshrrev_b32 v2, 9, v2')
e('v_mul_u32_u24 v3, 12, v2')
e('v_sub_u32 v3, v1, v3')
e(f'v_add_u32 v7, s{sCOL0}, v2')
e('v_mul_u32_u24 v15, 192, v7')
e('v_mov_b32 v40, 0x80000000')
for t in range(4):
    e(f'v_add_u32 v41, {5*t}, v2')
    e('v_bfe_u32 v41, v41, 2, 2')
    e('v_xor_b32 v41, v3, v41')
    e(f'v_lshl_add_u32 v{vXD[t]}, v41, 4, v15')
    if t in (0, 3):
        e(f'v_add_u32 v41, {5*t-2}, v7')
        e('v_cmp_gt_u32 vcc, 224, v41')
        e('s_nop 1')
        e(f'v_cndmask_b32 v{vXD[t]}, v40, v{vXD[t]}, vcc')
e(f's_mov_b32 s{sX+3}, 0x20000'); e(f's_mov_b32 s{sW+3}, 0x20000'); e(f's_mov_b32 s{sO+3}, 0x20000')
e(f's_mov_b32 s{sW+2}, {WBYTES}'); e(f's_mov_b32 s{sO+2}, {XBYTES}')
e(f's_mul_i32 s{sSOF}, s{sROW0}, {XROW}')
e(f's_sub_u32 s{sGROW}, s{sROW0}, 2')
e(f's_mul_i32 s3, s{sCOL0}, 192')
e(f's_add_u32 s{sOB}, s{sSOF}, s3')
e('s_waitcnt lgkmcnt(0)')
stamp()
e(f's_mov_b32 s{sW}, s6'); e(f's_and_b32 s{sW+1}, s7, 0xffff')
e(f's_sub_u32 s{sX}, s4, {XSH}'); e(f's_subb_u32 s{sX+1}, s5, 0'); e(f's_and_b32 s{sX+1}, s{sX+1}, 0xffff')
e('s_mov_b32 exec_hi, 0')
e(f'buffer_load_dword v4, v{vWP}, s[{sW}:{sW+3}], 0 offen')
e('s_mov_b32 exec_hi, 0x0fffffff')
e(f's_mov_b32 s{sO}, s8'); e(f's_and_b32 s{sO+1}, s9, 0xffff')
groups = []
for o in A.stream.split():
    if o[0] == 'x': groups.append(('x', int(o[1:]), 0))
    else: groups += [('w', int(o[1]), j) for j in range(6)]
gi = [0]; nv = [2]; landed = {}
xnext = [0]
def issue_group():
    k, a, j = groups[gi[0]]
    if k == 'w':
        e(f's_mov_b32 m0, {(a%4)*WI + j*RS}')
        e(f's_mov_b32 s3, {a*WI + j*RS}')
        for t in range(4):
            e(f'buffer_load_dwordx4 v{vL16}, s[{sW}:{sW+3}], s3 offen offset:{960*t} lds')
    else:
        assert a == xnext[0]; xnext[0] += 1
        e(f's_mov_b32 m0, {XB + a*RS}')
        e(f's_cmp_lt_u32 s{sGROW}, 224')
        e(f's_cselect_b32 s{sX+2}, {XBYTES+XSH}, 0')
        for t in range(4):
            e(f'buffer_load_dwordx4 v{vXD[t]}, s[{sX}:{sX+3}], s{sSOF} offen offset:{960*t} {A.ld} lds')
        e(f's_add_u32 s{sGROW}, s{sGROW}, 1')
        e(f's_add_u32 s{sSOF}, s{sSOF}, {XROW}')
    nv[0] += 4
    landed[(k, a, j)] = nv[0]
    gi[0] += 1
def gidx(k, a): return max(i for i, g in enumerate(groups) if g[0] == k and g[1] == a)
def hbar(need, limit=None):
    last = max(gidx(*n) for n in need) if need else -1
    tgt = min(len(groups), last + 1 + A.look)
    if limit is not None: tgt = min(tgt, limit)
    while gi[0] < tgt: issue_group()
    if need:
        cntv = nv[0] - landed[groups[last]]
        assert cntv < 64
        e(f's_waitcnt vmcnt({cntv})')
    e('s_barrier')
    stamp()
w4first = min(i for i, g in enumerate(groups) if g[0] == 'w' and g[1] == 4)
for k in range(5):
    hbar([('w', k), ('x', k)], limit=(w4first if k <= 2 else None))
hbar([('x', 5)])
hbar([('x', 6), ('x', 7)])
while gi[0] < len(groups): issue_group()
e('s_mov_b64 exec, -1')
for t in range(3):
    e(f'v_add_u32 v41, {64*t}, v1')
    e('v_mul_u32_u24 v42, 171, v41')
    e('v_lshrrev_b32 v42, 11, v42')
    e('v_add_u32 v41, v41, v42')
    e(f'v_lshlrev_b32 v{vRA[t]}, 4, v41')
    e(f'v_add_u32 v{vRA[t]}, {SB}, v{vRA[t]}')
def store_rows(rows):
    for n, o in enumerate(rows):
        for t in range(3):
            d = vSD + 12*n + 4*t
            e(f'ds_read_b128 v[{d}:{d+3}], v{vRA[t]} offset:{o*SROW}')
    tot = 3*len(rows)
    for n, o in enumerate(rows):
        e(f's_add_u32 s3, s{sOB}, {o*XROW}')
        for t in range(3):
            d = vSD + 12*n + 4*t
            e(f's_waitcnt lgkmcnt({tot-1-(3*n+t)})')
            e(f'buffer_store_dwordx4 v[{d}:{d+3}], v{vL16}, s[{sO}:{sO+3}], s3 offen offset:{1024*t} {A.st}')
            nv[0] += 1
for r in (7, 9, 11, 13, 15):
    need = [('x', q) for q in (r+1, r+2) if q <= 16]
    hbar(need)
    u = (r-7)//2
    store_rows([2*u, 2*u+1])
hbar([])
store_rows([10, 11])
e(f's_cmp_ge_u32 s{sSEG}, 8')
e('s_cbranch_scc1 L_finh')
hbar([])
store_rows([12])
lab('L_finh')
finish()

nstamp[0] = st_common
out.append('.p2align 6')
lab('L_rolecomp')
vQ, vP = 2, 3
vXA = [4, 5, 6, 7]
vWL = [8, 9]; vWH = [10, 11]
vSL, vSH = 12, 13
vCV = 14
vT0, vT1, vT2, vT3 = 14, 15, 16, 17
vXF = 24
vAL = 40
vAH = 64
vWFL = 80
vWFH = 160
e(f's_sub_u32 s{sG}, s{sWAVE}, 1')
e(f'v_lshrrev_b32 v{vQ}, 4, v1')
e(f'v_and_b32 v{vP}, 15, v1')
e(f's_mul_i32 s{sT1}, s{sG}, 3')
e(f'v_add_u32 v{vT0}, v{vP}, v{vQ}')
e(f'v_bfe_u32 v{vT1}, v{vT0}, 2, 2')
e(f'v_mul_u32_u24 v{vT0}, 192, v{vT0}')
e(f'v_add_u32 v{vT0}, {XB}, v{vT0}')
for k in range(3):
    e(f's_add_u32 s3, s{sT1}, {k}')
    e(f'v_xor_b32 v{vT2}, s3, v{vT1}')
    e(f'v_lshl_add_u32 v{vXA[k]}, v{vT2}, 4, v{vT0}')
e(f'v_add_u32 v{vT0}, 4, v{vP}')
e(f'v_bfe_u32 v{vT1}, v{vT0}, 2, 2')
e(f'v_mul_u32_u24 v{vT0}, 192, v{vT0}')
e(f'v_add_u32 v{vT0}, {XB}, v{vT0}')
e(f'v_add_u32 v{vT2}, s{sT1}, v{vQ}')
e(f'v_xor_b32 v{vT2}, v{vT2}, v{vT1}')
e(f'v_lshl_add_u32 v{vXA[3]}, v{vT2}, 4, v{vT0}')
e(f'v_cmp_eq_u32 vcc, 3, v{vQ}')
e(f'v_mov_b32 v{vT3}, {OOR}')
e(f'v_bfe_u32 v{vT0}, v1, 2, 2')
e(f'v_cndmask_b32 v{vXA[3]}, v{vXA[3]}, v{vT3}, vcc')
e(f'v_mul_u32_u24 v{vT0}, 48, v{vT0}')
e(f's_mul_i32 s{sT0}, s{sG}, 1152')
e(f'v_add_u32 v{vT0}, s{sT0}, v{vT0}')
e(f'v_mul_u32_u24 v{vT1}, 4608, v{vQ}')
e(f'v_add_u32 v{vWL[0]}, v{vT0}, v{vT1}')
e(f'v_min_u32 v{vT1}, 2, v{vQ}')
e(f'v_mul_u32_u24 v{vT1}, 384, v{vT1}')
e(f'v_add_u32 v{vWL[1]}, v{vT0}, v{vT1}')
e(f'v_add_u32 v{vWL[1]}, {4*4608}, v{vWL[1]}')
e(f'v_and_b32 v{vT0}, 1, v1')
e(f'v_lshlrev_b32 v{vT0}, 3, v{vT0}')
e(f'v_add_u32 v{vT0}, 32, v{vT0}')
e(f'v_bfe_u32 v{vT1}, v1, 1, 1')
e(f'v_mul_u32_u24 v{vT2}, {WI}, v{vT1}')
e(f'v_sub_u32 v{vT0}, v{vT0}, v{vT2}')
e(f'v_add_u32 v{vWH[0]}, v{vWL[0]}, v{vT0}')
e(f'v_add_u32 v{vWH[1]}, v{vWL[1]}, v{vT0}')
e(f'v_and_b32 v{vT0}, 3, v1')
e(f'v_lshl_add_u32 v{vWL[0]}, v{vT0}, 3, v{vWL[0]}')
e(f'v_lshl_add_u32 v{vWL[1]}, v{vT0}, 3, v{vWL[1]}')
e(f'v_cmp_eq_u32 vcc, 0, v{vT1}')
e(f'v_mov_b32 v18, {WI}')
e(f'v_mov_b32 v19, {(-3*WI) & 0xffffffff}')
e(f'v_cndmask_b32 v18, v18, v19, vcc')
e(f'v_cndmask_b32 v19, v19, v{vT3}, vcc')
e(f'v_mul_u32_u24 v{vT0}, {SPX}, v{vP}')
e(f's_mul_i32 s{sT0}, s{sG}, 48')
e(f's_add_u32 s{sT0}, s{sT0}, {SB}')
e(f'v_add_u32 v{vT0}, s{sT0}, v{vT0}')
e(f'v_lshl_add_u32 v{vSL}, v{vQ}, 3, v{vT0}')
e(f'v_and_b32 v{vT1}, 1, v{vQ}')
e(f'v_lshl_add_u32 v{vSH}, v{vT1}, 3, v{vT0}')
e(f'v_lshrrev_b32 v{vT1}, 1, v{vQ}')
e(f'v_mul_u32_u24 v{vT1}, {SROW}, v{vT1}')
e(f'v_add3_u32 v{vSH}, v{vSH}, v{vT1}, 32')
e('s_waitcnt lgkmcnt(0)')
stamp()

class T: issued = 0; done = 0
regop = {}
def lds(instr, regs=()):
    e(instr); T.issued += 1
    for r in regs: regop[r] = T.issued
def need(*regs):
    k = max(regop.get(r, 0) for r in regs)
    if k > T.done:
        n = min(15, T.issued - k)
        e(f's_waitcnt lgkmcnt({n})')
        T.done = T.issued - n
def drain():
    if T.done < T.issued:
        e('s_waitcnt lgkmcnt(0)'); T.done = T.issued
def cbar():
    e('s_barrier'); stamp()
def wl(i, k): return vWFL + (i*4+k)*4
def wh(i, k): return vWFH + (i*4+k)*4
def al(o): return vAL + 4*(o % 6)
def ah(u): return vAH + 4*(u % 4)
def rd_w(kind, i, k):
    for h in range(2):
        a = (vWL if kind == 'l' else vWH)[0 if k < 3 else 1]
        off = (k*384 if k < 3 else 0) + h*192
        r = (wl(i, k) if kind == 'l' else wh(i, k))
        lds(f'ds_read_b64_tr_b16 v[{r+2*h}:{r+2*h+1}], v{a} offset:{off}', regs=[r] if h == 1 else [])
def adv_w(kind, i):
    if kind == 'l':
        d = WI if i != 3 else (-3*WI) & 0xffffffff
        for a in vWL: e(f'v_add_u32 v{a}, {d}, v{a}')
    else:
        for a in vWH:
            if i < 3: e(f'v_add_u32 v{a}, {WI}, v{a}')
            else: e(f'v_add_u32 v{a}, v{18 if i == 3 else 19}, v{a}')
def rd_x(r, k):
    d = vXF + 4*k
    lds(f'ds_read_b128 v[{d}:{d+3}], v{vXA[k]} offset:{r*RS}', regs=[d])
def mf(kind, r, i, k):
    b = vXF + 4*k
    if kind == 'l': a = wl(i, k); c = al(r-i)
    else: a = wh(i, k); c = ah((r-i)//2)
    need(a, b)
    src = '0' if (i == 0 and k == 0) else f'v[{c}:{c+3}]'
    e(f'v_mfma_f32_16x16x32_bf16 v[{c}:{c+3}], v[{a}:{a+3}], v[{b}:{b+3}], {src}')
def units(r):
    U = []
    his = [('h', i) for i in range(5, -1, -1) if (r-i) % 2 == 0 and 0 <= (r-i)//2 <= 6 and r-i >= 0]
    los = [('l', i) for i in range(4, -1, -1) if 0 <= r-i <= 12]
    U = los[:1] + his[:1] + los[1:] + his[1:]
    return U
def out_lo(o, t):
    c = al(o)
    return [f'v_cvt_pk_bf16_f32 v{t}, v{c}, v{c+1}', f'v_cvt_pk_bf16_f32 v{t+1}, v{c+2}, v{c+3}',
            ('lds', f'ds_write_b64 v{vSL}, v[{t}:{t+1}] offset:{o*SROW}')]
def out_hi(u, t):
    c = ah(u)
    return [f'v_cvt_pk_bf16_f32 v{t}, v{c}, v{c+1}', f'v_cvt_pk_bf16_f32 v{t+1}, v{c+2}, v{c+3}',
            ('lds', f'ds_write_b64 v{vSH}, v[{t}:{t+1}] offset:{2*u*SROW}')]
def emit(f):
    if isinstance(f, tuple): lds(f[1], regs=['lastw'])
    else: e(f)

for r in range(5):
    cbar()
    for k in range(4): rd_x(r, k)
    for k in range(4):
        rd_w('l', r, k); rd_w('h', r, k)
    if r < 4: adv_w('l', r)
    adv_w('h', r)
    if r < 4:
        U = units(r)
        old = [u for u in U if u[1] != r]; new = [u for u in U if u[1] == r]
        for k in range(4):
            for (kind, i) in old: mf(kind, r, i, k)
        for k in range(4):
            for (kind, i) in new: mf(kind, r, i, k)
        drain()
for r in range(4, 17):
    U = units(r)
    if r == 4: U = [u for u in U if u[1] != 4] + [u for u in U if u[1] == 4]
    F = []
    if r >= 5: F += out_lo(r-5, vCV + 0)
    if r >= 6 and r % 2 == 0: F += out_hi((r-6)//2, vCV + 2)
    n = len(U)
    if r == 16:
        e('s_nop 4')
        for f in F: emit(f)
        F = []
        drain(); cbar()
        e(f's_cmp_ge_u32 s{sSEG}, 8')
        e('s_cbranch_scc1 L_finc')
    pos = 0
    for k in range(4):
        for (kind, i) in U:
            mf(kind, r, i, k)
            pos += 1
            if F and pos >= 8:
                emit(F.pop(0))
        if k == 0 and (r == 4 or (r % 2 == 1)):
            need('lastw')
            cbar()
        if r == 4: rd_w('h', 5, k)
        if r < 16: rd_x(r+1, k)
    for f in F: emit(f)
e('s_nop 7')
for f in out_lo(12, vCV) + out_hi(6, vCV+2): emit(f)
drain(); cbar()
lab('L_finc')
finish()

if DIAG:
    lab('L_diag')
    e('s_getreg_b32 s3, hwreg(HW_REG_XCC_ID)')
    e('s_getreg_b32 s33, hwreg(HW_REG_HW_ID)')
    e('s_waitcnt lgkmcnt(0)')
    e('s_mov_b32 s12, s10'); e('s_and_b32 s13, s11, 0xffff'); e('s_mov_b32 s14, 0x100000'); e('s_mov_b32 s15, 0x20000')
    e(f's_mul_i32 s4, s2, 5'); e(f's_add_u32 s4, s4, s{sWAVE}'); e('s_lshl_b32 s4, s4, 8')
    regs = [3,33,36,37,38,39] + list(range(sSTAMP, sSTAMP+56))
    e('v_mov_b32 v2, 0')
    for j,rg in enumerate(regs):
        e(f'v_writelane_b32 v2, s{rg}, {j}')
    e('v_lshlrev_b32 v3, 2, v1')
    e('s_nop 4')
    e('buffer_store_dword v2, v3, s[12:15], s4 offen')
    e('s_waitcnt vmcnt(0)')
lab('L_end')
e('s_endpgm')
tail = '''.section .rodata,"a"
.p2align 6
.amdhsa_kernel standalone__grouped__vision_kernel
  .amdhsa_next_free_vgpr 256
  .amdhsa_next_free_sgpr 96
  .amdhsa_accum_offset 256
  .amdhsa_group_segment_fixed_size 0
  .amdhsa_kernarg_size 40
  .amdhsa_user_sgpr_count 2
  .amdhsa_user_sgpr_kernarg_segment_ptr 1
  .amdhsa_system_sgpr_workgroup_id_x 1
.end_amdhsa_kernel
'''
print(hdr); print('\n'.join(out)); print(tail)
```

```python
import sys, argparse
ap = argparse.ArgumentParser()
ap.add_argument('--diag', action='store_true')
ap.add_argument('--stamps', default='all')
ap.add_argument('--st', default='sc0 sc1')
ap.add_argument('--ld', default='')
ap.add_argument('--look', type=int, default=36)
ap.add_argument('--plan', default='D')
ap.add_argument('--stl', default=None)
ap.add_argument('--mon', action='store_true')
ap.add_argument('--sync', default='fffffff')
ap.add_argument('--flead', type=int, default=4)
ap.add_argument('--prio', type=int, default=0)
ap.add_argument('--rdlag', type=int, default=1)
ap.add_argument('--maxfill', type=int, default=1)
ap.add_argument('--stream', default=None)
ap.add_argument('--rt', action='store_true')
ap.add_argument('--lat', type=int, default=70)
ap.add_argument('--rampfill', type=int, default=2)
A = ap.parse_args()
DIAG = A.diag
out = []
def e(s): out.append('    ' + s)
def lab(s): out.append(s + ':')

XROW = 43008; XBYTES = 224*XROW; WBYTES = 115200
WI = 23040; WS = 23168; RS = 3840
XB = 0
WB = 12*RS
SB = WB + WS
FLG = WB + 5*WS
SPX = 208; SROW = 16*SPX
OOR = 0x40000
LDS = FLG + 64 + 256
XSH = 2*XROW + 384
WSH = 512
assert WB % 256 == 0

sX, sW, sO = 12, 16, 20
sROW0, sCOL0, sSEG, sWAVE, sG, sT0, sT1, sT2 = 24, 25, 26, 27, 28, 29, 30, 31
sK = 32; sSOF = 33; sGROW = 34; sOB = 35
sSTAMP = 40
nstamp = [0]
def stamp():
    if DIAG:
        e(f"{'s_memrealtime' if A.rt else 's_memtime'} s[{sSTAMP+2*nstamp[0]}:{sSTAMP+2*nstamp[0]+1}]")
        nstamp[0] += 1
def finish():
    if DIAG:
        stamp()
        e('s_waitcnt vmcnt(0)')
        stamp()
        for z in range(nstamp[0], 28): e(f's_mov_b64 s[{sSTAMP+2*z}:{sSTAMP+2*z+1}], 0')
        e('s_memrealtime s[38:39]')
        e('s_branch L_diag')
    else:
        e('s_endpgm')

def L(*t): return [('l', i) for i in t]
def H(*t): return [('h', i) for i in t]
S = A.sync
if A.plan == 'C':
    stream = 'w0 x0 x1 x2 w1 x3 w2 x4 w3 x5 w4 x6 x7 x8 x9 x10 x11 x12 x13 x14 x15 x16'
    def sy(n, need): return ('bar' if S[n] == 'b' else 'flag', need, [])
    plan = [
     ('bar', ['w0'], []), ('rdw','l',0), ('rdw','h',0),
     ('bar', ['x0','x1'], []), ('rdx',0,'wh2'), ('rdx',1,'wh3'),
     ('visit',0,'wh2',L(0)+H(0)),
     sy(0,['x2']), ('rdx',2,'wl4'),
     ('visit',1,'wh3',L(0)), ('visit',2,'wl4',L(0)),
     sy(1,['w1']), ('rdw','l',1), ('rdw','h',1),
     ('visit',2,'wl4',H(0)), ('visit',1,'wh3',L(1)),
     sy(2,['x3']), ('rdx',3,'wh4'),
     ('visit',2,'wl4',L(1)), ('visit',1,'wh3',H(1)), ('visit',3,'wh4',L(0)),
     sy(3,['w2']), ('rdw','l',2), ('rdw','h',2),
     ('visit',3,'wh4',L(1)+H(1)),
     sy(4,['x4']), ('rdx',4,'wh5'),
     ('visit',2,'wl4',L(2)), ('visit',3,'wh4',L(2)), ('visit',2,'wl4',H(2)), ('visit',4,'wh5',L(0)+H(0)),
     sy(5,['w3']), ('rdw','l',3), ('rdw','h',3),
     ('visit',4,'wh5',L(2,1)+H(2)),
     sy(6,['x5']), ('rdx',5,'x'),
     ('visit',3,'wh4',L(3)+H(3)), ('visit',4,'wh5',L(3)),
     ('bar', ['w4','x6'], []), ('rdw','l',4), ('rdw','h',4),
     ('visit',5,'x',L(2,1,0)+H(1)), ('visit',4,'wh5',L(4)+H(4)),
     ('rdw','h',5),
     ('visit',5,'x',L(4,3)+H(3,5)),
    ]
    first_steady = 6
elif A.plan == 'D':
    stream = 'w0 x0 x1 x2 x3 w1 x4 w2 x5 w3 x6 w4 x7 x8 x9 x10 x11 x12 x13 x14 x15 x16'
    plan = [
     ('bar', ['w0'], []), ('rdw','l',0), ('rdw','h',0),
     ('bar', ['x0','x1'], []), ('rdx',0,'wh2'), ('rdx',1,'wh3'),
     ('visit',0,'wh2',L(0)+H(0)), ('visit',1,'wh3',L(0)),
     ('flag', ['x2','x3'], []), ('rdx',2,'wl4'), ('rdx',3,'wh4'),
     ('visit',2,'wl4',L(0)),
     ('flag', ['w1'], []), ('rdw','l',1), ('rdw','h',1),
     ('visit',2,'wl4',H(0)), ('visit',3,'wh4',L(0)),
     ('visit',1,'wh3',L(1)), ('visit',2,'wl4',L(1)), ('visit',1,'wh3',H(1)),
     ('flag', ['w2','x4'], []), ('rdx',4,'wh5'), ('rdw','l',2), ('rdw','h',2),
     ('visit',3,'wh4',L(1)+H(1)), ('visit',4,'wh5',L(1,0)+H(0)),
     ('visit',2,'wl4',L(2)+H(2)), ('visit',3,'wh4',L(2)),
     ('flag', ['w3','x5'], []), ('rdx',5,'x'), ('rdw','l',3), ('rdw','h',3),
     ('visit',4,'wh5',L(2)+H(2)), ('visit',5,'x',L(1,0)+H(1)),
     ('visit',3,'wh4',L(3)+H(3)),
     ('bar', ['w4','x6'], []), ('rdw','l',4), ('rdw','h',4),
     ('visit',4,'wh5',L(3)), ('visit',5,'x',L(3,2)+H(3)), ('visit',4,'wh5',L(4)+H(4)),
     ('rdw','h',5),
     ('visit',5,'x',L(4)+H(5)),
    ]
    first_steady = 6
if A.stream: stream = A.stream
def units(r):
    his = [('h', i) for i in range(5, -1, -1) if (r-i) % 2 == 0 and 0 <= (r-i)//2 <= 6 and r-i >= 0]
    los = [('l', i) for i in range(4, -1, -1) if 0 <= r-i <= 12]
    return los[:1] + his[:1] + los[1:] + his[1:]
for r in range(first_steady, 17):
    plan.append(('steady', r))

hdr = f'''; grouped 5x5 conv, NHWC bf16, 224x224x96, G=4.  generated by dev/gen6.py
; @launch grid=(252,1,1) block=(512,1,1) lds={LDS}
.amdgcn_target "amdgcn-amd-amdhsa--gfx950"
.text
.p2align 12
.globl standalone__grouped__vision_kernel
.p2align 8
.type standalone__grouped__vision_kernel,@function
standalone__grouped__vision_kernel:'''

if DIAG: e('s_memrealtime s[36:37]')
stamp()
e('s_load_dwordx4 s[4:7], s[0:1], 0')
e('s_load_dwordx2 s[8:9], s[0:1], 16')
if DIAG: e('s_load_dwordx2 s[10:11], s[0:1], 32')
e('v_lshrrev_b32 v2, 6, v0')
e('v_and_b32 v1, 63, v0')
e(f'v_readfirstlane_b32 s{sWAVE}, v2')
e('s_cmp_ge_u32 s2, 252')
e('s_cbranch_scc1 L_end')
e(f's_cmp_ge_u32 s{sWAVE}, 4')
e('s_cbranch_scc1 L_rolecomp')
e(f's_cmp_lg_u32 s{sWAVE}, 0')
e('s_cbranch_scc1 L_rolestore')
st_common = nstamp[0]
def tile_decode_l():
    return ['s_and_b32 s3, s2, 7',
    f's_lshl_b32 s{sT1}, s3, 5',
    f's_add_u32 s{sT0}, s{sK}, s{sT1}',
    f's_max_u32 s{sT1}, s3, 4',
    f's_sub_u32 s{sT1}, s{sT1}, 4',
    f's_sub_u32 s{sT0}, s{sT0}, s{sT1}',
    f's_mul_i32 s{sSEG}, s{sT0}, 4682',
    f's_lshr_b32 s{sSEG}, s{sSEG}, 16']
def tile_decode():
    for x in tile_decode_l(): e(x)
def rowcol_l():
    return [f's_mul_i32 s3, s{sSEG}, 14',
    f's_sub_u32 s{sCOL0}, s{sT0}, s3',
    f's_lshl_b32 s{sCOL0}, s{sCOL0}, 4',
    f's_mul_i32 s{sROW0}, s{sSEG}, 12',
    f's_min_u32 s3, s{sSEG}, 8',
    f's_add_u32 s{sROW0}, s{sROW0}, s3',
    f's_mul_i32 s{sSOF}, s{sROW0}, {XROW}']
def steady_bar(r):
    if r == 6: return (['x7'], [])
    if r % 2 == 1:
        return ([f'x{q}' for q in (r+1, r+2) if q <= 16], [r-7, r-6])
    return None
bars = []
for it in plan:
    if it[0] == 'bar': bars.append((it[1], [], 'b'))
    elif it[0] == 'flag': bars.append((it[1], [], 'f'))
    elif it[0] == 'steady' and steady_bar(it[1]): bars.append(steady_bar(it[1]) + ('b',))
bars += [([], [10, 11, 12], 'b')]

lab('L_roleload')
e('s_getpc_b64 s[22:23]')
lab('L_pc')
e(f's_lshr_b32 s{sK}, s2, 3')
e(f's_and_b32 s{sT1}, s{sK}, 7')
e(f's_lshl_b32 s{sT1}, s{sT1}, 11')
e(f'v_lshl_add_u32 v3, v1, 7, s{sT1}')
e('v_min_u32 v3, L_end-L_pc, v3')
e('s_mov_b64 exec, 0xffff')
e('global_load_dword v4, v3, s[22:23]')
e('s_mov_b64 exec, -1')
vWP = 6
vXD = [8, 9, 10, 11]
vE = [44, 45, 46]; vOd = [47, 48, 49]; vM = 50
sWO = 23
e(f's_lshl_b32 s{sT1}, s{sK}, 12')
e(f's_add_u32 s{sT1}, s{sT1}, {WSH}')
e(f'v_lshl_add_u32 v{vWP}, v1, 7, s{sT1}')
e(f's_mov_b32 s{sT1}, -24')
e(f's_mov_b32 s{sT2}, -46')
e('v_add_u32 v43, 32, v1')
for ph in range(3):
    if ph: e(f'v_add_u32 v41, {64*ph}, v1')
    src = 'v41' if ph else 'v1'
    e(f'v_mul_u32_u24 v42, 171, {src}')
    e('v_lshrrev_b32 v42, 12, v42')
    e(f'v_mad_i32_i24 v41, v42, s{sT1}, {src}')
    e('v_lshrrev_b32 v42, 1, v41')
    e('v_add_u32 v42, v42, v41')
    e(f'v_mad_i32_i24 v51, v41, 3, s{sT2}')
    e('v_min_u32 v42, v42, v51')
    e('v_sub_u32 v41, v43, v41')
    e(f'v_add_lshl_u32 v{vE[ph]}, v41, v42, 4')
    e('v_add_u32 v51, 12, v42')
    e('v_add_u32 v42, -12, v42')
    e('v_min_u32 v42, v42, v51')
    e(f'v_add_lshl_u32 v{vOd[ph]}, v41, v42, 4')
e('v_cmp_gt_u32 vcc, 32, v1')
e(f's_mov_b32 s{sW+3}, 0x20000')
e(f's_mov_b32 s{sW+2}, {WBYTES+WSH}')
e(f'v_cndmask_b32 v{vM}, v{vOd[1]}, v{vE[1]}, vcc')
e(f'v_mov_b32 v53, {FLG}')
e('v_lshl_add_u32 v52, v1, 2, v53')
e('ds_write_b32 v52, v53')
e('v_mov_b32 v52, 0x80000000')
e('s_mov_b32 exec_hi, 0')
e('s_waitcnt lgkmcnt(0)')
stamp()
e(f's_sub_u32 s{sW}, s6, {WSH}'); e(f's_subb_u32 s{sW+1}, s7, 0'); e(f's_and_b32 s{sW+1}, s{sW+1}, 0xffff')
e(f'buffer_load_dword v4, v{vWP}, s[{sW}:{sW+3}], 0 offen')
defer = tile_decode_l() + rowcol_l() + [
    f's_sub_u32 s{sGROW}, s{sROW0}, 2',
    f's_sub_u32 s{sX}, s4, {XSH}', f's_subb_u32 s{sX+1}, s5, 0', f's_and_b32 s{sX+1}, s{sX+1}, 0xffff', f's_mov_b32 s{sX+3}, 0x20000',
    'v_mul_u32_u24 v2, 43, v1', 'v_lshrrev_b32 v2, 9, v2', 'v_mul_u32_u24 v3, 12, v2', 'v_sub_u32 v3, v1, v3',
    f'v_add_u32 v7, s{sCOL0}, v2', 'v_mul_u32_u24 v15, 192, v7', 'v_mov_b32 v40, 0x80000000']
for t in range(4):
    if t in (0, 3):
        defer += [f'v_add_u32 v41, {5*t-2}, v7', 'v_cmp_gt_u32 vcc, 224, v41']
    defer += [f'v_add_u32 v41, {5*t}, v2', 'v_bfe_u32 v41, v41, 2, 2', 'v_xor_b32 v41, v3, v41', f'v_lshl_add_u32 v{vXD[t]}, v41, 4, v15']
    if t in (0, 3):
        defer += [f'v_cndmask_b32 v{vXD[t]}, v40, v{vXD[t]}, vcc']
groups = []
for o in stream.split():
    if o[0] == 'x': groups.append(('x', int(o[1:]), 0, 4))
    else: groups += [('w', int(o[1]), j, 4 if j < 5 else 3) for j in range(6)]
gi = [0]; nv = [2]; landed = {}
xnext = [0]; exmode = [None]
wpat = [vE[0], vE[1], vE[2], vE[0], vM, vOd[2], vOd[0], vOd[1], vOd[2]]
def setexec(m):
    if exmode[0] != m:
        e('s_mov_b32 exec_hi, ' + ('-1' if m == 'w' else '0x0fffffff')); exmode[0] = m
def issue_group():
    k, a, j, n = groups[gi[0]]
    if k == 'x' and defer:
        setexec('w')
        while defer: e(defer.pop(0))
    setexec(k)
    if k == 'w':
        e(f's_mov_b32 m0, {WB + a*WS + j*4096}')
        e(f's_mov_b32 s{sWO}, {a*WI + j*4096}')
        for t in range(n):
            if j == 5 and t == 2:
                assert not defer
                e('s_mov_b32 exec_hi, 0'); exmode[0] = 'h'
            e(f'buffer_load_dwordx4 v{wpat[(4*j+t)%9]}, s[{sW}:{sW+3}], s{sWO} offen offset:{1024*t} lds')
            for z in range(3 if t < n-1 else 1):
                if defer: e(defer.pop(0))
    else:
        assert a == xnext[0]; xnext[0] += 1
        e(f's_mov_b32 m0, {XB + a*RS}')
        e(f's_cmp_lt_u32 s{sGROW}, 224')
        e(f's_cselect_b32 s{sX+2}, {XBYTES+XSH}, 0')
        for t in range(4):
            e(f'buffer_load_dwordx4 v{vXD[t]}, s[{sX}:{sX+3}], s{sSOF} offen offset:{960*t} {A.ld} lds')
        e(f's_add_u32 s{sGROW}, s{sGROW}, 1')
        e(f's_add_u32 s{sSOF}, s{sSOF}, {XROW}')
    nv[0] += n
    landed[gi[0]] = nv[0]
    gi[0] += 1
def gidx(tag): return max(i for i, g in enumerate(groups) if g[0] == tag[0] and g[1] == int(tag[1:]))
x12first = min(i for i, g in enumerate(groups) if g[0] == 'x' and g[1] == 12)
w4done = [False]
flagafter = {}
nflag = 0
for need, rows, kind in bars:
    if kind == 'f':
        nflag += 1
        flagafter[max(gidx(n) for n in need)] = nflag
def issue_g():
    g = gi[0]
    issue_group()
    if g in flagafter:
        e(f's_mov_b32 m0, {FLG + 64 - 4*flagafter[g]}')
        e('s_nop 0')
        e(f'buffer_load_dword v52, s[{sW}:{sW+3}], 0 offen lds')
        nv[0] += 1
for need, rows, kind in bars:
    if kind == 'f': continue
    if not need:
        if DIAG: e('s_barrier')
        break
    last = max(gidx(n) for n in need)
    while gi[0] <= last: issue_g()
    while gi[0] < len(groups) and nv[0] - landed[last] + groups[gi[0]][3] <= A.look and (w4done[0] or gi[0] < x12first):
        issue_g()
    cntv = nv[0] - landed[last]
    assert cntv < 64
    e(f's_waitcnt vmcnt({cntv})')
    if cntv == 0 and gi[0] == len(groups) and not DIAG: break
    e('s_barrier')
    stamp()
    if 'w4' in need: w4done[0] = True
finish()

nstamp[0] = st_common
lab('L_rolestore')
vL16 = 5; vRA = 6; vSD = 8
e(f's_lshr_b32 s{sK}, s2, 3')
tile_decode()
for x in rowcol_l(): e(x)
e(f's_mul_i32 s3, s{sCOL0}, 192')
e(f's_add_u32 s{sOB}, s{sSOF}, s3')
e(f's_sub_u32 s3, s{sWAVE}, 1')
e('s_lshl_b32 s3, s3, 6')
e('v_add_u32 v2, s3, v1')
e(f'v_lshlrev_b32 v{vL16}, 4, v2')
e('v_mul_u32_u24 v3, 171, v2')
e('v_lshrrev_b32 v3, 11, v3')
e('v_add_u32 v2, v2, v3')
e(f'v_lshlrev_b32 v{vRA}, 4, v2')
e(f'v_add_u32 v{vRA}, {SB}, v{vRA}')
e(f's_mov_b32 s{sO+3}, 0x20000'); e(f's_mov_b32 s{sO+2}, {XBYTES}')
e('s_waitcnt lgkmcnt(0)')
e(f's_mov_b32 s{sO}, s8'); e(f's_and_b32 s{sO+1}, s9, 0xffff')
stamp()
nb = 0
monn = [0]
for need, rows, kind in bars:
    if kind == 'f':
        if DIAG and A.mon:
            monn[0] += 1
            e(f'v_mov_b32 v40, {FLG}')
            e('s_mov_b32 s19, 0x10000')
            lab(f'L_mon{monn[0]}')
            e('s_sub_u32 s19, s19, 1'); e(f's_cbranch_scc1 L_mox{monn[0]}')
            e(f'ds_read_b32 v41, v40 offset:{64-4*monn[0]}'); e('s_waitcnt lgkmcnt(0)'); e(f'v_cmp_eq_u32 vcc, 0, v41'); e(f's_cbranch_vccz L_mon{monn[0]}')
            lab(f'L_mox{monn[0]}')
            stamp()
        continue
    e('s_barrier')
    if rows: stamp()
    for n, o in enumerate(rows):
        d = vSD + 12*(nb % 2) + 4*n
        e(f'ds_read_b128 v[{d}:{d+3}], v{vRA} offset:{o*SROW}')
    for n, o in enumerate(rows):
        d = vSD + 12*(nb % 2) + 4*n
        if o == 12:
            e(f's_cmp_ge_u32 s{sSEG}, 8')
            e('s_cbranch_scc1 L_fins')
        e(f's_add_u32 s3, s{sOB}, {o*XROW}')
        e(f's_waitcnt lgkmcnt({len(rows)-1-n})')
        fl = A.st if (A.stl is None or o < 10) else A.stl
        e(f'buffer_store_dwordx4 v[{d}:{d+3}], v{vL16}, s[{sO}:{sO+3}], s3 offen {fl}')
    if rows: nb += 1
lab('L_fins')
finish()

nstamp[0] = st_common
out.append('.p2align 6')
lab('L_rolecomp')
vQ, vP = 2, 3
vXA = [4, 5, 6, 7]
vWL = [8, 9, 10]; vWH = [11, 20, 21]
vSL, vSH = 12, 13
vCV = 14
vT0, vT1, vT2, vT3 = 14, 15, 16, 17
vXF = 24
vAL = 40
vAH = 64
vWFL = 80
vWFH = 160
e(f's_lshr_b32 s{sK}, s2, 3')
tile_decode()
e(f's_sub_u32 s{sG}, s{sWAVE}, 4')
if A.prio: e(f's_setprio {A.prio}')
e(f'v_lshrrev_b32 v{vQ}, 4, v1')
e(f'v_and_b32 v{vP}, 15, v1')
e(f's_mul_i32 s{sT1}, s{sG}, 3')
e(f'v_add_u32 v{vT0}, v{vP}, v{vQ}')
e(f'v_bfe_u32 v{vT1}, v{vT0}, 2, 2')
e(f'v_mul_u32_u24 v{vT0}, 192, v{vT0}')
for k in range(3):
    e(f's_add_u32 s3, s{sT1}, {k}')
    e(f'v_xor_b32 v{vT2}, s3, v{vT1}')
    e(f'v_lshl_add_u32 v{vXA[k]}, v{vT2}, 4, v{vT0}')
e(f'v_add_u32 v{vT0}, 4, v{vP}')
e(f'v_bfe_u32 v{vT1}, v{vT0}, 2, 2')
e(f'v_mul_u32_u24 v{vT0}, 192, v{vT0}')
e(f'v_add_u32 v{vT2}, s{sT1}, v{vQ}')
e(f'v_xor_b32 v{vT2}, v{vT2}, v{vT1}')
e(f'v_lshl_add_u32 v{vXA[3]}, v{vT2}, 4, v{vT0}')
e(f'v_cmp_eq_u32 vcc, 3, v{vQ}')
e(f'v_mov_b32 v{vT3}, {OOR}')
e(f's_mul_i32 s{sT0}, s{sG}, 1152')
e(f's_add_u32 s{sT0}, s{sT0}, {WB}')
e(f'v_cndmask_b32 v{vXA[3]}, v{vXA[3]}, v{vT3}, vcc')
e(f'v_mul_u32_u24 v{vT0}, 4608, v{vQ}')
e(f'v_add_u32 v{vT0}, s{sT0}, v{vT0}')
e(f'v_min_u32 v{vT1}, 2, v{vQ}')
e(f'v_mul_u32_u24 v{vT1}, 384, v{vT1}')
e(f's_add_u32 s{sT0}, s{sT0}, {4*4608}')
e(f'v_add_u32 v{vT1}, s{sT0}, v{vT1}')
e(f'v_lshlrev_b32 v{vT2}, 3, v{vP}')
e(f'v_add_u32 v{vWL[2]}, v{vT1}, v{vT2}')
e(f'v_add_u32 v{vT2}, v{vT0}, v{vT2}')
e(f'v_and_b32 v18, 1, v{vQ}')
e(f'v_lshl_add_u32 v{vWL[0]}, v18, 7, v{vT2}')
e(f'v_xor_b32 v19, 1, v18')
e(f'v_lshl_add_u32 v{vWL[1]}, v19, 7, v{vT2}')
e(f'v_bfe_u32 v{vT2}, v1, 2, 2')
e(f'v_lshlrev_b32 v{vT2}, 4, v{vT2}')
e(f'v_and_b32 v22, 1, v1')
e(f'v_lshl_add_u32 v{vT2}, v22, 3, v{vT2}')
e(f'v_add_u32 v{vT2}, 256, v{vT2}')
e(f'v_bfe_u32 v22, v1, 1, 1')
e(f'v_mul_u32_u24 v23, {OOR}, v22')
e(f'v_add_u32 v{vT2}, v{vT2}, v23')
e(f'v_add_u32 v{vWH[2]}, v{vT1}, v{vT2}')
e(f'v_add_u32 v{vT2}, v{vT0}, v{vT2}')
e(f'v_lshl_add_u32 v{vWH[0]}, v18, 6, v{vT2}')
e(f'v_lshl_add_u32 v{vWH[1]}, v19, 6, v{vT2}')
e(f'v_mul_u32_u24 v18, {OOR+WS}, v22')
e(f'v_xor_b32 v22, 1, v22')
e(f'v_mul_u32_u24 v19, {OOR}, v22')
e(f'v_mov_b32 v22, {FLG}')
e(f'v_mul_u32_u24 v{vT0}, {SPX}, v{vP}')
e(f's_mul_i32 s{sT0}, s{sG}, 48')
e(f's_add_u32 s{sT0}, s{sT0}, {SB}')
e(f'v_add_u32 v{vT0}, s{sT0}, v{vT0}')
e(f'v_lshl_add_u32 v{vSL}, v{vQ}, 3, v{vT0}')
e(f'v_and_b32 v{vT1}, 1, v{vQ}')
e(f'v_lshl_add_u32 v{vSH}, v{vT1}, 3, v{vT0}')
e(f'v_lshrrev_b32 v{vT1}, 1, v{vQ}')
e(f'v_mul_u32_u24 v{vT1}, {SROW}, v{vT1}')
e(f'v_add3_u32 v{vSH}, v{vSH}, v{vT1}, 32')
e('s_waitcnt lgkmcnt(0)')
stamp()
NFLAG = sum(1 for it in plan if it[0] == 'flag')
if NFLAG:
    e('s_mov_b32 s21, 0x40000')
    e('s_branch L_go')
    for n in range(1, NFLAG+1):
        lab(f'L_spin{n}')
        e('s_sub_u32 s21, s21, 1')
        e(f's_cbranch_scc1 L_back{n}')
        e(f'ds_read_b32 v23, v22 offset:{64-4*n}')
        e('s_waitcnt lgkmcnt(0)')
        e(f'v_cmp_eq_u32 vcc, 0, v23')
        e(f's_cbranch_vccz L_spin{n}')
        e(f's_branch L_back{n}')
    lab('L_go')

def wl(i, k): return vWFL + (i*4+k)*4
def wh(i, k): return vWFH + (i*4+k)*4
def al(o): return vAL + 4*(o % 6)
def ah(u): return vAH + 4*(u % 4)
def bufreg(buf, k):
    if buf == 'x': return vXF + 4*k
    return (wl if buf[1] == 'l' else wh)(int(buf[2]), k)

M = []; F = []
lastuse = {}
lastacc = {}
started = set()
def add_mfma(kind, r, i, k, b):
    if kind == 'l': a = wl(i, k); c = al(r-i); key = ('l', r-i)
    else: a = wh(i, k); c = ah((r-i)//2); key = ('h', (r-i)//2)
    first = key not in started
    started.add(key)
    src = '0' if first else f'v[{c}:{c+3}]'
    M.append(dict(txt=f'v_mfma_f32_16x16x32_bf16 v[{c}:{c+3}], v[{a}:{a+3}], v[{b}:{b+3}], {src}', a=a, b=b, c=c, first=first, key=key))
    lastuse[a] = lastuse[b] = len(M)-1
    lastacc[key] = len(M)-1
def fill(txt, lds=False, dst=None, after=-1, dist=0, bar=False, wr=False, frees=None):
    F.append(dict(txt=txt, lds=lds, dst=dst, after=after, dist=dist, bar=bar, wr=wr, frees=frees))
def q_rdx(r, buf, k):
    d = bufreg(buf, k)
    fill(f'ds_read_b128 v[{d}:{d+3}], v{vXA[k]} offset:{r*RS}', lds=True, dst=d, after=lastuse.get(d, -1) + (A.rdlag if (buf == 'x' and r > first_steady and r < 14) else 0))
wslot = {'l': 0, 'h': 0}
def q_rdw(kind, i):
    regs = vWL if kind == 'l' else vWH
    hs = 128 if kind == 'l' else 64
    base = (i % 3)*WS
    for k in range(4):
        d = (wl if kind == 'l' else wh)(i, k)
        for h in range(2):
            if k < 3: a = regs[h]; off = base + k*384
            else: a = regs[2]; off = base + h*hs
            fill(f'ds_read_b64_tr_b16 v[{d+2*h}:{d+2*h+1}], v{a} offset:{off}', lds=True, dst=(d if h == 1 else None), after=lastuse.get(d, -1))
    if i == 0 and kind == 'h':
        for a in regs: fill(f'v_sub_u32 v{a}, v{a}, v18')
    if i == 2:
        for a in regs: fill(f'v_add_u32 v{a}, {3*WS}, v{a}')
    if i == 4 and kind == 'h':
        for a in regs: fill(f'v_add_u32 v{a}, v19, v{a}')
cvn = [0]
def q_out(kind, idx):
    key = (kind, idx)
    c = al(idx) if kind == 'l' else ah(idx)
    t = vCV + 2*(cvn[0] % 2); cvn[0] += 1
    fill(f'v_cvt_pk_bf16_f32 v{t}, v{c}, v{c+1}', after=lastacc[key], dist=8)
    fill(f'v_cvt_pk_bf16_f32 v{t+1}, v{c+2}, v{c+3}', after=lastacc[key], dist=8, frees=c)
    if kind == 'l': fill(f'ds_write_b64 v{vSL}, v[{t}:{t+1}] offset:{idx*SROW}', lds=True, wr=True)
    else: fill(f'ds_write_b64 v{vSH}, v[{t}:{t+1}] offset:{2*idx*SROW}', lds=True, wr=True)
def q_bar(after, drain):
    fill('s_barrier', bar=True, after=after, wr=drain)
done_units = set()
pending_out = []
def note_done(kind, r, i):
    done_units.add((kind, r, i))
    if kind == 'l':
        o = r-i
        if all(('l', o+t, t) in done_units for t in range(5)): pending_out.append(('l', o))
    else:
        u = (r-i)//2
        top = 6 if u < 6 else 5
        if all(('h', 2*u+t, t) in done_units for t in range(top)): pending_out.append(('h', u))
cut16 = None
nfl = [0]; lastchk = [-1]; timed = {}
for n, it in enumerate(plan):
    if it[0] == 'bar': q_bar(len(M)-1, 'all' if 'w4' in it[1] else 'w')
    elif it[0] == 'flag':
        nfl[0] += 1
        timed[max(len(M)-1-A.flead, lastchk[0]+1)] = dict(txt=f'ds_read_b32 v23, v22 offset:{64-4*nfl[0]}', lds=True, dst='flag', after=-1, dist=0, bar=False, wr=False, frees=None)
        fill(nfl[0], bar='chk', after=len(M)-1)
        lastchk[0] = len(M)-1
    elif it[0] == 'rdx':
        for k in range(4): q_rdx(it[1], it[2], k)
    elif it[0] == 'rdw': q_rdw(it[1], it[2])
    else:
        if it[0] == 'visit': r, buf, U = it[1], it[2], it[3]
        else: r, buf, U = it[1], 'x', units(it[1])
        nxt = plan[n+1] if n+1 < len(plan) else None
        reload_row = nxt[1] if (nxt and nxt[0] == 'steady') else None
        po = list(pending_out); pending_out.clear()
        if it[0] == 'steady' and r == 16:
            for p in po: q_out(*p)
            po = []
            cut16 = (len(M), len(F))
        for k in range(4):
            for (kind, i) in U: add_mfma(kind, r, i, k, bufreg(buf, k))
            if k == 0:
                if it[0] == 'steady' and steady_bar(r): q_bar(len(M)-1, 'w')
            if reload_row is not None: q_rdx(reload_row, 'x', k)
            if k == 0:
                for p in po: q_out(*p)
        for (kind, i) in U: note_done(kind, r, i)
for p in pending_out: q_out(*p)
q_bar(len(M)-1, 'w')
assert len(M) == 424, len(M)

class T: issued = 0; done = 0; slot = 0; lastw = 0; t = 0; pipe = 0; ldsq = 0
opready = {0: 0}
LAT = A.lat
regop = {}; mslot = {}; freed = set(); nbar = [0]
def ee(s): e(s); T.slot += 1; T.t += 4
def waitop(k):
    if k > T.done:
        n = min(14, T.issued - k)
        ee(f's_waitcnt lgkmcnt({n})'); T.done = T.issued - n
fi = [0]
def emit_f(mi):
    f = F[fi[0]]
    assert f['after'] < mi, (f, mi)
    if f['dist'] and f['after'] >= 0:
        gap = T.slot - mslot[f['after']] - 1
        if gap < f['dist']:
            e(f"s_nop {f['dist']-gap-1}"); T.slot += f['dist']-gap
    if f['bar'] == 'chk':
        waitop(regop['flag'])
        ee("v_cmp_eq_u32 vcc, 0, v23")
        ee(f"s_cbranch_vccz L_spin{f['txt']}")
        lab(f"L_back{f['txt']}")
        if A.stamps == 'all': stamp()
    elif f['bar']:
        waitop(T.issued if f['wr'] == 'all' else T.lastw)
        ee('s_barrier')
        if A.stamps == 'all' or str(nbar[0]) in A.stamps.split(','): stamp()
        nbar[0] += 1
    else:
        ee(f['txt'])
        if f['lds']:
            T.issued += 1
            T.ldsq = max(T.t + LAT, T.ldsq + (16 if 'b128' in f['txt'] else 8))
            opready[T.issued] = T.ldsq
            if f['dst'] is not None: regop[f['dst']] = T.issued
            if f['wr']: T.lastw = T.issued
        if f['frees'] is not None: freed.add(f['frees'])
    fi[0] += 1
def ready(f, mi):
    if f['after'] >= mi: return False
    if f['dist'] and f['after'] >= 0 and T.slot - mslot[f['after']] - 1 < f['dist']: return False
    return True
prod = []
accbusy = {}
for mi, m in enumerate(M):
    if cut16 and mi == cut16[0]:
        tail12 = [f['txt'] for f in F[fi[0]:cut16[1]] if 'ds_read' not in f['txt']]
        assert not any(f['bar'] for f in F[fi[0]:cut16[1]])
        ee(f's_cmp_ge_u32 s{sSEG}, 8'); ee('s_cbranch_scc1 L_tail12')
    needidx = -1
    for j in range(fi[0], len(F)):
        if F[j]['after'] >= mi: break
        if F[j]['dst'] in (m['a'], m['b']): needidx = j
        if m['first'] and m['c'] in accbusy and F[j]['frees'] == m['c']: needidx = max(needidx, j)
    while fi[0] <= needidx: emit_f(mi)
    if m['first']:
        if m['c'] in accbusy: assert m['c'] in freed, m
        freed.discard(m['c']); accbusy[m['c']] = 1
    kop = max(regop.get(m['a'], 0), regop.get(m['b'], 0))
    while opready[kop] > T.t + 4 and fi[0] < len(F) and ready(F[fi[0]], mi) and not F[fi[0]]['bar'] and T.issued - kop < 14:
        emit_f(mi)
    waitop(kop)
    T.t = max(T.t, opready[kop], T.pipe)
    mslot[mi] = T.slot
    T.pipe = T.t + 16
    ee(m['txt']); T.t += 4
    nf = 0
    if mi in timed:
        F.insert(fi[0], timed[mi]); emit_f(mi+1); nf += 1
        if cut16: cut16 = (cut16[0], cut16[1]+1)
    while fi[0] < len(F) and nf < (A.rampfill if mi < 130 else A.maxfill) and ready(F[fi[0]], mi+1):
        emit_f(mi+1); nf += 1
while fi[0] < len(F): emit_f(len(M))
st_end = nstamp[0]
finish()
lab('L_tail12')
e('s_nop 7')
for x in tail12: e(x)
e('s_waitcnt lgkmcnt(0)')
e('s_barrier')
nstamp[0] = st_end
finish()

if DIAG:
    lab('L_diag')
    e('s_getreg_b32 s3, hwreg(HW_REG_XCC_ID)')
    e('s_getreg_b32 s33, hwreg(HW_REG_HW_ID)')
    e('s_waitcnt lgkmcnt(0)')
    e('s_mov_b32 s12, s10'); e('s_and_b32 s13, s11, 0xffff'); e('s_mov_b32 s14, 0x100000'); e('s_mov_b32 s15, 0x20000')
    e(f's_mul_i32 s4, s2, 8'); e(f's_add_u32 s4, s4, s{sWAVE}'); e('s_lshl_b32 s4, s4, 8')
    regs = [3,33,36,37,38,39] + list(range(sSTAMP, sSTAMP+56))
    e('v_mov_b32 v2, 0')
    for j,rg in enumerate(regs):
        e(f'v_writelane_b32 v2, s{rg}, {j}')
    e('v_lshlrev_b32 v3, 2, v1')
    e('s_nop 4')
    e('buffer_store_dword v2, v3, s[12:15], s4 offen')
    e('s_waitcnt vmcnt(0)')
lab('L_end')
e('s_endpgm')
tail = '''.section .rodata,"a"
.p2align 6
.amdhsa_kernel standalone__grouped__vision_kernel
  .amdhsa_next_free_vgpr 256
  .amdhsa_next_free_sgpr 96
  .amdhsa_accum_offset 256
  .amdhsa_group_segment_fixed_size 0
  .amdhsa_kernarg_size 40
  .amdhsa_user_sgpr_count 2
  .amdhsa_user_sgpr_kernarg_segment_ptr 1
  .amdhsa_system_sgpr_workgroup_id_x 1
.end_amdhsa_kernel
'''
print(hdr); print('\n'.join(out)); print(tail)
```

```python
import sys, argparse
ap = argparse.ArgumentParser()
ap.add_argument('--diag', action='store_true')
ap.add_argument('--stamps', default='all')
ap.add_argument('--st', default='sc0 sc1')
ap.add_argument('--ld', default='nt')
ap.add_argument('--ldw', default='')
ap.add_argument('--look', type=int, default=36)
ap.add_argument('--plan', default='E6')
ap.add_argument('--stl', default=None)
ap.add_argument('--look2', type=int, default=20)
ap.add_argument('--mon', action='store_true')
ap.add_argument('--sync', default='fffffff')
ap.add_argument('--flead', type=int, default=4)
ap.add_argument('--prio', type=int, default=0)
ap.add_argument('--rdlag', type=int, default=1)
ap.add_argument('--maxfill', type=int, default=1)
ap.add_argument('--stream', default=None)
ap.add_argument('--rt', action='store_true')
ap.add_argument('--lat', type=int, default=70)
ap.add_argument('--rampfill', type=int, default=1)
A = ap.parse_args()
DIAG = A.diag
out = []
def e(s): out.append('    ' + s)
def lab(s): out.append(s + ':')

XROW = 43008; XBYTES = 224*XROW; WBYTES = 115200
WI = 23040; WS = 23168; RS = 3840
XB = 0
WB = 12*RS
SB = WB + WS
FLG = WB + 5*WS
SPX = 208; SROW = 16*SPX
OOR = 0x40000
LDS = FLG + 64 + 256
XSH = 2*XROW + 384
WSH = 512
assert WB % 256 == 0

sX, sW, sO = 12, 16, 20
sROW0, sCOL0, sSEG, sWAVE, sG, sT0, sT1, sT2 = 24, 25, 26, 27, 28, 29, 30, 31
sK = 32; sSOF = 33; sGROW = 34; sOB = 35
sSTAMP = 40
nstamp = [0]
def stamp():
    if DIAG:
        e(f"{'s_memrealtime' if A.rt else 's_memtime'} s[{sSTAMP+2*nstamp[0]}:{sSTAMP+2*nstamp[0]+1}]")
        nstamp[0] += 1
def finish():
    if DIAG:
        stamp()
        e('s_waitcnt vmcnt(0)')
        stamp()
        for z in range(nstamp[0], 28): e(f's_mov_b64 s[{sSTAMP+2*z}:{sSTAMP+2*z+1}], 0')
        e('s_memrealtime s[38:39]')
        e('s_branch L_diag')
    else:
        e('s_endpgm')

def L(*t): return [('l', i) for i in t]
def H(*t): return [('h', i) for i in t]
BUF = {0:'wh2', 1:'wh3', 2:'wl4', 3:'wh4', 4:'wh5', 5:'x'}
def mv(*u): return ('mvisit', [(r, BUF[r], k, t) for (k, r, t) in u])
def l(t, *rows): return [('l', r, t) for r in rows]
def h(t, *rows): return [('h', r, t) for r in rows]
def rdx(*rows): return [('rdx', r, BUF[r]) for r in rows]
if A.plan == 'E6':
    stream = 'x0 x1 x2 x3 x4 x5 p w0 w1 w2 w3 w4 x6 x7 x8 x9 x10 x11 x12 x13 x14 x15 x16'
    plan = [
     ('bar', ['x5'], []), *rdx(0,1,2,3,4,5),
     ('bar', ['w0'], []), ('rdw','l',0), ('rdw','h',0),
     mv(*l(0,0,1,2,3,4)),
     ('flag', ['w1'], []), ('rdw','l',1), ('rdw','h',1),
     mv(*h(0,0,2,4), *l(0,5)),
     mv(*l(1,1,2,3)),
     ('flag', ['w2'], []), ('rdw','l',2), ('rdw','h',2),
     mv(*h(1,1,3,5), *l(1,4,5)),
     mv(*l(2,2,3)),
     ('flag', ['w3'], []), ('rdw','l',3), ('rdw','h',3),
     mv(*h(2,2,4), *l(2,4,5)),
     mv(*l(3,3), *h(3,3)),
     ('bar', ['w4'], []), ('rdw','l',4), ('rdw','h',4),
     mv(*l(3,4,5), *h(3,5)),
     mv(*l(4,4), *h(4,4)),
     ('rdw','h',5),
     ('bar', ['x6'], []),
     ('visit',5,'x',L(4)+H(5)),
    ]
    first_steady = 6
elif A.plan == 'E5':
    stream = 'x0 x1 x2 x3 x4 p w0 w1 w2 w3 x5 w4 x6 x7 x8 x9 x10 x11 x12 x13 x14 x15 x16'
    plan = [
     ('bar', ['x4'], []), *rdx(0,1,2,3,4),
     ('bar', ['w0'], []), ('rdw','l',0), ('rdw','h',0),
     mv(*l(0,0,1,2,3,4)),
     ('flag', ['w1'], []), ('rdw','l',1), ('rdw','h',1),
     mv(*h(0,0,2,4)),
     mv(*l(1,1,2,3)),
     ('flag', ['w2'], []), ('rdw','l',2), ('rdw','h',2),
     mv(*h(1,1,3), *l(1,4)),
     mv(*l(2,2,3)),
     ('flag', ['w3'], []), ('rdw','l',3), ('rdw','h',3),
     mv(*h(2,2,4), *l(2,4)),
     mv(*l(3,3), *h(3,3)),
     ('flag', ['x5'], []), *rdx(5),
     mv(*l(3,4)),
     ('visit',5,'x',L(1,0)+H(1)),
     ('bar', ['w4','x6'], []), ('rdw','l',4), ('rdw','h',4),
     ('visit',5,'x',L(3,2)+H(3)),
     mv(*l(4,4), *h(4,4)),
     ('rdw','h',5),
     ('visit',5,'x',L(4)+H(5)),
    ]
    first_steady = 6
if A.stream: stream = A.stream
def units(r, HH=13):
    his = [('h', i) for i in range(5, -1, -1) if (r-i) % 2 == 0 and 0 <= r-i <= HH-1]
    los = [('l', i) for i in range(4, -1, -1) if 0 <= r-i <= HH-1]
    return los[:1] + his[:1] + los[1:] + his[1:]
for r in range(first_steady, 17):
    plan.append(('steady', r))

hdr = f'''; grouped 5x5 conv, NHWC bf16, 224x224x96, G=4.  generated by dev/gen8.py
; @launch grid=(252,1,1) block=(512,1,1) lds={LDS}
.amdgcn_target "amdgcn-amd-amdhsa--gfx950"
.text
.p2align 12
.globl standalone__grouped__vision_kernel
.p2align 8
.type standalone__grouped__vision_kernel,@function
standalone__grouped__vision_kernel:'''

if DIAG: e('s_memrealtime s[36:37]')
stamp()
e('s_load_dwordx4 s[4:7], s[0:1], 0')
e('s_load_dwordx2 s[8:9], s[0:1], 16')
if DIAG: e('s_load_dwordx2 s[10:11], s[0:1], 32')
e('v_lshrrev_b32 v2, 6, v0')
e('v_and_b32 v1, 63, v0')
e(f'v_readfirstlane_b32 s{sWAVE}, v2')
e('s_cmp_ge_u32 s2, 252')
e('s_cbranch_scc1 L_end')
e(f's_cmp_ge_u32 s{sWAVE}, 4')
e('s_cbranch_scc1 L_rolecomp')
e(f's_cmp_lg_u32 s{sWAVE}, 0')
e('s_cbranch_scc1 L_rolestore')
st_common = nstamp[0]
def tile_decode_l():
    return ['s_and_b32 s3, s2, 7',
    f's_lshl_b32 s{sT1}, s3, 5',
    f's_add_u32 s{sT0}, s{sK}, s{sT1}',
    f's_max_u32 s{sT1}, s3, 4',
    f's_sub_u32 s{sT1}, s{sT1}, 4',
    f's_sub_u32 s{sT0}, s{sT0}, s{sT1}',
    f's_mul_i32 s{sSEG}, s{sT0}, 4682',
    f's_lshr_b32 s{sSEG}, s{sSEG}, 16']
def tile_decode():
    for x in tile_decode_l(): e(x)
def rowcol_l():
    return [f's_mul_i32 s3, s{sSEG}, 14',
    f's_sub_u32 s{sCOL0}, s{sT0}, s3',
    f's_lshl_b32 s{sCOL0}, s{sCOL0}, 4',
    f's_mul_i32 s{sROW0}, s{sSEG}, 12',
    f's_min_u32 s3, s{sSEG}, 8',
    f's_add_u32 s{sROW0}, s{sROW0}, s3',
    f's_mul_i32 s{sSOF}, s{sROW0}, {XROW}']
def steady_bar(r):
    if r == 6: return (['x7'], [])
    if r % 2 == 1:
        return ([f'x{q}' for q in (r+1, r+2) if q <= 16], [r-7, r-6])
    return None
bars = []
for it in plan:
    if it[0] == 'bar': bars.append((it[1], [], 'b'))
    elif it[0] == 'flag': bars.append((it[1], [], 'f'))
    elif it[0] == 'steady' and steady_bar(it[1]): bars.append(steady_bar(it[1]) + ('b',))
bars += [([], [10, 11, 12], 'b')]

lab('L_roleload')
e('s_getpc_b64 s[22:23]')
lab('L_pc')
e(f's_lshr_b32 s{sK}, s2, 3')
e(f's_and_b32 s{sT1}, s{sK}, 7')
e(f's_lshl_b32 s{sT1}, s{sT1}, 11')
e(f'v_lshl_add_u32 v3, v1, 7, s{sT1}')
e('v_min_u32 v3, L_end-L_pc, v3')
e('s_mov_b64 exec, 0xffff')
e('global_load_dword v4, v3, s[22:23]')
e('s_mov_b64 exec, -1')
vWP = 6
vXD = [8, 9, 10, 11]
vE = [44, 45, 46]; vOd = [47, 48, 49]; vM = 50
sWO = 23
tile_decode()
for x in rowcol_l(): e(x)
e(f's_sub_u32 s{sGROW}, s{sROW0}, 2')
e(f's_mul_i32 s3, s{sCOL0}, 192')
e(f's_add_u32 s{sSOF}, s{sSOF}, s3')
e(f's_cmp_eq_u32 s{sCOL0}, 0')
e(f's_cselect_b32 s{sT1}, 24, 0')
e(f's_cmp_eq_u32 s{sCOL0}, 208')
e(f's_cselect_b32 s{sT2}, 24, 64')
e(f'v_mov_b32 v53, {FLG}')
e('v_lshl_add_u32 v52, v1, 2, v53')
e('ds_write_b32 v52, v53')
e('v_mov_b32 v52, 0x80000000')
e(f'v_cmp_gt_u32 vcc, s{sT1}, v1')
e('v_add_u32 v2, 16, v1')
e('v_lshrrev_b32 v2, 6, v2')
e('v_xor_b32 v2, v2, v1')
e(f'v_lshlrev_b32 v{vXD[0]}, 4, v2')
e(f'v_cndmask_b32 v{vXD[0]}, v{vXD[0]}, v52, vcc')
e(f'v_cmp_le_u32 vcc, s{sT2}, v1')
e('v_lshrrev_b32 v2, 5, v1')
e('v_add_u32 v2, 1, v2')
e('v_xor_b32 v2, v2, v1')
e(f'v_lshlrev_b32 v{vXD[1]}, 4, v2')
e('v_add_u32 v2, 0xb0, v1')
e('v_lshrrev_b32 v2, 6, v2')
e('v_xor_b32 v2, v2, v1')
e(f'v_lshlrev_b32 v{vXD[2]}, 4, v2')
e(f'v_lshlrev_b32 v{vXD[3]}, 4, v1')
e(f'v_cndmask_b32 v{vXD[3]}, v{vXD[3]}, v52, vcc')
e(f's_mov_b32 s{sX+3}, 0x20000')
e(f's_mov_b32 s{sW+3}, 0x20000')
e(f's_mov_b32 s{sW+2}, {WBYTES+WSH}')
e(f's_lshl_b32 s{sT1}, s{sK}, 12')
e(f's_add_u32 s{sT1}, s{sT1}, {WSH}')
e(f'v_lshl_add_u32 v{vWP}, v1, 7, s{sT1}')
e(f's_mov_b32 s{sT1}, -24')
e(f's_mov_b32 s{sT2}, -46')
e('v_add_u32 v43, 32, v1')
e('s_waitcnt lgkmcnt(0)')
stamp()
e(f's_sub_u32 s{sX}, s4, {XSH}'); e(f's_subb_u32 s{sX+1}, s5, 0'); e(f's_and_b32 s{sX+1}, s{sX+1}, 0xffff')
defer = []
for ph in range(3):
    if ph: defer.append(f'v_add_u32 v41, {64*ph}, v1')
    src = 'v41' if ph else 'v1'
    defer += [f'v_mul_u32_u24 v42, 171, {src}', 'v_lshrrev_b32 v42, 12, v42', f'v_mad_i32_i24 v41, v42, s{sT1}, {src}',
        'v_lshrrev_b32 v42, 1, v41', 'v_add_u32 v42, v42, v41', f'v_mad_i32_i24 v51, v41, 3, s{sT2}', 'v_min_u32 v42, v42, v51',
        'v_sub_u32 v41, v43, v41', f'v_add_lshl_u32 v{vE[ph]}, v41, v42, 4', 'v_add_u32 v51, 12, v42', 'v_add_u32 v42, -12, v42',
        'v_min_u32 v42, v42, v51', f'v_add_lshl_u32 v{vOd[ph]}, v41, v42, 4']
    if ph == 1: defer += ['v_cmp_gt_u32 vcc, 32, v1']
defer += [f'v_cndmask_b32 v{vM}, v{vOd[1]}, v{vE[1]}, vcc']
groups = []
for o in stream.split():
    if o[0] == 'x': groups.append(('x', int(o[1:]), 0, 4))
    elif o == 'p': groups.append(('p', 0, 0, 1))
    else: groups += [('w', int(o[1]), j, 4 if j < 5 else 3) for j in range(6)]
gi = [0]; nv = [1]; landed = {}
xnext = [0]; exmode = ['-1']
wpat = [vE[0], vE[1], vE[2], vE[0], vM, vOd[2], vOd[0], vOd[1], vOd[2]]
wsrd = [False]
def setexec(m):
    if exmode[0] != m:
        e(f's_mov_b32 exec_hi, {m}'); exmode[0] = m
def issue_group():
    k, a, j, n = groups[gi[0]]
    if k != 'x' and not wsrd[0]:
        e(f's_sub_u32 s{sW}, s6, {WSH}'); e(f's_subb_u32 s{sW+1}, s7, 0'); e(f's_and_b32 s{sW+1}, s{sW+1}, 0xffff')
        wsrd[0] = True
    if k == 'p':
        setexec('0')
        e(f'buffer_load_dword v4, v{vWP}, s[{sW}:{sW+3}], 0 offen')
    elif k == 'w':
        setexec('-1')
        while defer: e(defer.pop(0))
        e(f's_mov_b32 m0, {WB + a*WS + j*4096}')
        e(f's_mov_b32 s{sWO}, {a*WI + j*4096}')
        for t in range(n):
            if j == 5 and t == 2: setexec('0')
            e(f'buffer_load_dwordx4 v{wpat[(4*j+t)%9]}, s[{sW}:{sW+3}], s{sWO} offen offset:{1024*t} {A.ldw} lds')
    else:
        assert a == xnext[0]; xnext[0] += 1
        setexec('-1')
        e(f's_mov_b32 m0, {XB + a*RS}')
        if a in (0, 1, 2) or a >= 14:
            if a == 16: e(f's_cmp_lt_u32 s{sSEG}, 8')
            else: e(f's_cmp_lt_i32 s{sGROW}, {224 - a}' if a >= 14 else f's_cmp_ge_i32 s{sGROW}, {-a}')
            e(f's_cselect_b32 s{sX+2}, {XBYTES+XSH}, 0')
        else: e('s_nop 0')
        for t in range(4):
            if t == 3: setexec('0xffff')
            e(f'buffer_load_dwordx4 v{vXD[t]}, s[{sX}:{sX+3}], s{sSOF} offen offset:{1024*t} {A.ld} lds')
            if t < 3:
                for z in range(3 if t < 2 else 2):
                    if defer: e(defer.pop(0))
        e(f's_add_u32 s{sSOF}, s{sSOF}, {XROW}')
    nv[0] += n
    landed[gi[0]] = nv[0]
    gi[0] += 1
def gidx(tag): return max(i for i, g in enumerate(groups) if g[0] == tag[0] and g[1] == int(tag[1:]))
x12first = min(i for i, g in enumerate(groups) if g[0] == 'x' and g[1] == 12)
w4done = [False]
flagafter = {}
nflag = 0
for need, rows, kind in bars:
    if kind == 'f':
        nflag += 1
        flagafter[max(gidx(n) for n in need)] = nflag
def issue_g():
    g = gi[0]
    issue_group()
    if g in flagafter:
        e(f's_mov_b32 m0, {FLG + 64 - 4*flagafter[g]}')
        e('s_nop 0')
        e(f'buffer_load_dword v52, s[{sW}:{sW+3}], 0 offen lds')
        nv[0] += 1
for need, rows, kind in bars:
    if kind == 'f': continue
    if not need:
        if DIAG: e('s_barrier')
        break
    last = max(gidx(n) for n in need)
    while gi[0] <= last: issue_g()
    while gi[0] < len(groups) and nv[0] - landed[last] + groups[gi[0]][3] <= (A.look2 if w4done[0] else A.look) and (w4done[0] or gi[0] < x12first):
        issue_g()
    cntv = nv[0] - landed[last]
    assert cntv < 64
    e(f's_waitcnt vmcnt({cntv})')
    if cntv == 0 and gi[0] == len(groups) and not DIAG: break
    e('s_barrier')
    stamp()
    if 'w4' in need: w4done[0] = True
finish()

nstamp[0] = st_common
lab('L_rolestore')
vL16 = 5; vRA = 6; vSD = 8
e(f's_lshr_b32 s{sK}, s2, 3')
tile_decode()
for x in rowcol_l(): e(x)
e(f's_mul_i32 s3, s{sCOL0}, 192')
e(f's_add_u32 s{sOB}, s{sSOF}, s3')
e(f's_sub_u32 s3, s{sWAVE}, 1')
e('s_lshl_b32 s3, s3, 6')
e('v_add_u32 v2, s3, v1')
e(f'v_lshlrev_b32 v{vL16}, 4, v2')
e('v_mul_u32_u24 v3, 171, v2')
e('v_lshrrev_b32 v3, 11, v3')
e('v_add_u32 v2, v2, v3')
e(f'v_lshlrev_b32 v{vRA}, 4, v2')
e(f'v_add_u32 v{vRA}, {SB}, v{vRA}')
e(f's_mov_b32 s{sO+3}, 0x20000'); e(f's_mov_b32 s{sO+2}, {XBYTES}')
e('s_waitcnt lgkmcnt(0)')
e(f's_mov_b32 s{sO}, s8'); e(f's_and_b32 s{sO+1}, s9, 0xffff')
stamp()
nb = 0
monn = [0]
for need, rows, kind in bars:
    if kind == 'f':
        if DIAG and A.mon:
            monn[0] += 1
            e(f'v_mov_b32 v40, {FLG}')
            e('s_mov_b32 s19, 0x10000')
            lab(f'L_mon{monn[0]}')
            e('s_sub_u32 s19, s19, 1'); e(f's_cbranch_scc1 L_mox{monn[0]}')
            e(f'ds_read_b32 v41, v40 offset:{64-4*monn[0]}'); e('s_waitcnt lgkmcnt(0)'); e(f'v_cmp_eq_u32 vcc, 0, v41'); e(f's_cbranch_vccz L_mon{monn[0]}')
            lab(f'L_mox{monn[0]}')
            stamp()
        continue
    e('s_barrier')
    if rows: stamp()
    for n, o in enumerate(rows):
        d = vSD + 12*(nb % 2) + 4*n
        e(f'ds_read_b128 v[{d}:{d+3}], v{vRA} offset:{o*SROW}')
    for n, o in enumerate(rows):
        d = vSD + 12*(nb % 2) + 4*n
        if o == 12:
            e(f's_cmp_ge_u32 s{sSEG}, 8')
            e('s_cbranch_scc1 L_fins')
        e(f's_add_u32 s3, s{sOB}, {o*XROW}')
        e(f's_waitcnt lgkmcnt({len(rows)-1-n})')
        fl = A.st if (A.stl is None or o < 10) else A.stl
        e(f'buffer_store_dwordx4 v[{d}:{d+3}], v{vL16}, s[{sO}:{sO+3}], s3 offen {fl}')
    if rows: nb += 1
lab('L_fins')
finish()

nstamp[0] = st_common
out.append('.p2align 6')
lab('L_rolecomp')
vQ, vP = 2, 3
vXA = [4, 5, 6, 7]
vWL = [8, 9, 10]; vWH = [11, 20, 21]
vSL, vSH = 12, 13
vCV = 14
vT0, vT1, vT2, vT3 = 14, 15, 16, 17
vXF = 24
vAL = 40
vAH = 64
vWFL = 80
vWFH = 160
e(f's_lshr_b32 s{sK}, s2, 3')
tile_decode()
e(f's_sub_u32 s{sG}, s{sWAVE}, 4')
if A.prio: e(f's_setprio {A.prio}')
e(f'v_lshrrev_b32 v{vQ}, 4, v1')
e(f'v_and_b32 v{vP}, 15, v1')
e(f's_mul_i32 s{sT1}, s{sG}, 3')
e(f'v_add_u32 v{vT0}, v{vP}, v{vQ}')
e(f'v_bfe_u32 v{vT1}, v{vT0}, 2, 2')
e(f'v_mul_u32_u24 v{vT0}, 192, v{vT0}')
for k in range(3):
    e(f's_add_u32 s3, s{sT1}, {k}')
    e(f'v_xor_b32 v{vT2}, s3, v{vT1}')
    e(f'v_lshl_add_u32 v{vXA[k]}, v{vT2}, 4, v{vT0}')
e(f'v_add_u32 v{vT0}, 4, v{vP}')
e(f'v_bfe_u32 v{vT1}, v{vT0}, 2, 2')
e(f'v_mul_u32_u24 v{vT0}, 192, v{vT0}')
e(f'v_add_u32 v{vT2}, s{sT1}, v{vQ}')
e(f'v_xor_b32 v{vT2}, v{vT2}, v{vT1}')
e(f'v_lshl_add_u32 v{vXA[3]}, v{vT2}, 4, v{vT0}')
e(f'v_cmp_eq_u32 vcc, 3, v{vQ}')
e(f'v_mov_b32 v{vT3}, {OOR}')
e(f's_mul_i32 s{sT0}, s{sG}, 1152')
e(f's_add_u32 s{sT0}, s{sT0}, {WB}')
e(f'v_cndmask_b32 v{vXA[3]}, v{vXA[3]}, v{vT3}, vcc')
e(f'v_mul_u32_u24 v{vT0}, 4608, v{vQ}')
e(f'v_add_u32 v{vT0}, s{sT0}, v{vT0}')
e(f'v_min_u32 v{vT1}, 2, v{vQ}')
e(f'v_mul_u32_u24 v{vT1}, 384, v{vT1}')
e(f's_add_u32 s{sT0}, s{sT0}, {4*4608}')
e(f'v_add_u32 v{vT1}, s{sT0}, v{vT1}')
e(f'v_lshlrev_b32 v{vT2}, 3, v{vP}')
e(f'v_add_u32 v{vWL[2]}, v{vT1}, v{vT2}')
e(f'v_add_u32 v{vT2}, v{vT0}, v{vT2}')
e(f'v_and_b32 v18, 1, v{vQ}')
e(f'v_lshl_add_u32 v{vWL[0]}, v18, 7, v{vT2}')
e(f'v_xor_b32 v19, 1, v18')
e(f'v_lshl_add_u32 v{vWL[1]}, v19, 7, v{vT2}')
e(f'v_bfe_u32 v{vT2}, v1, 2, 2')
e(f'v_lshlrev_b32 v{vT2}, 4, v{vT2}')
e(f'v_and_b32 v22, 1, v1')
e(f'v_lshl_add_u32 v{vT2}, v22, 3, v{vT2}')
e(f'v_add_u32 v{vT2}, 256, v{vT2}')
e(f'v_bfe_u32 v22, v1, 1, 1')
e(f'v_mul_u32_u24 v23, {OOR}, v22')
e(f'v_add_u32 v{vT2}, v{vT2}, v23')
e(f'v_add_u32 v{vWH[2]}, v{vT1}, v{vT2}')
e(f'v_add_u32 v{vT2}, v{vT0}, v{vT2}')
e(f'v_lshl_add_u32 v{vWH[0]}, v18, 6, v{vT2}')
e(f'v_lshl_add_u32 v{vWH[1]}, v19, 6, v{vT2}')
e(f'v_mul_u32_u24 v18, {OOR+WS}, v22')
e(f'v_xor_b32 v22, 1, v22')
e(f'v_mul_u32_u24 v19, {OOR}, v22')
e(f'v_mov_b32 v22, {FLG}')
e(f'v_mul_u32_u24 v{vT0}, {SPX}, v{vP}')
e(f's_mul_i32 s{sT0}, s{sG}, 48')
e(f's_add_u32 s{sT0}, s{sT0}, {SB}')
e(f'v_add_u32 v{vT0}, s{sT0}, v{vT0}')
e(f'v_lshl_add_u32 v{vSL}, v{vQ}, 3, v{vT0}')
e(f'v_and_b32 v{vT1}, 1, v{vQ}')
e(f'v_lshl_add_u32 v{vSH}, v{vT1}, 3, v{vT0}')
e(f'v_lshrrev_b32 v{vT1}, 1, v{vQ}')
e(f'v_mul_u32_u24 v{vT1}, {SROW}, v{vT1}')
e(f'v_add3_u32 v{vSH}, v{vSH}, v{vT1}, 32')
e('s_waitcnt lgkmcnt(0)')
stamp()
NFLAG = sum(1 for it in plan if it[0] == 'flag')
if NFLAG:
    e('s_mov_b32 s21, 0x40000')
    e('s_branch L_go')
    for n in range(1, NFLAG+1):
        lab(f'L_spin{n}')
        e('s_sub_u32 s21, s21, 1')
        e(f's_cbranch_scc1 L_back{n}')
        e(f'ds_read_b32 v23, v22 offset:{64-4*n}')
        e('s_waitcnt lgkmcnt(0)')
        e(f'v_cmp_eq_u32 vcc, 0, v23')
        e(f's_cbranch_vccz L_spin{n}')
        e(f's_branch L_back{n}')
    lab('L_go')

def wl(i, k): return vWFL + (i*4+k)*4
def wh(i, k): return vWFH + (i*4+k)*4
def al(o): return vAL + 4*(o % 6)
def ah(u): return vAH + 4*(u % 4)
def bufreg(buf, k):
    if buf == 'x': return vXF + 4*k
    return (wl if buf[1] == 'l' else wh)(int(buf[2]), k)

def gen_compute(HH, plan0):
    M = []; F = []
    lastuse = {}
    lastacc = {}
    started = set()
    def add_mfma(kind, r, i, k, b):
        if kind == 'l': a = wl(i, k); c = al(r-i); key = ('l', r-i)
        else: a = wh(i, k); c = ah((r-i)//2); key = ('h', (r-i)//2)
        first = key not in started
        started.add(key)
        src = '0' if first else f'v[{c}:{c+3}]'
        M.append(dict(txt=f'v_mfma_f32_16x16x32_bf16 v[{c}:{c+3}], v[{a}:{a+3}], v[{b}:{b+3}], {src}', a=a, b=b, c=c, first=first, key=key))
        lastuse[a] = lastuse[b] = len(M)-1
        lastacc[key] = len(M)-1
    def fill(txt, lds=False, dst=None, after=-1, dist=0, bar=False, wr=False, frees=None):
        F.append(dict(txt=txt, lds=lds, dst=dst, after=after, dist=dist, bar=bar, wr=wr, frees=frees))
    def q_rdx(r, buf, k):
        d = bufreg(buf, k)
        fill(f'ds_read_b128 v[{d}:{d+3}], v{vXA[k]} offset:{r*RS}', lds=True, dst=d, after=lastuse.get(d, -1) + (A.rdlag if (buf == 'x' and r > first_steady and r < 14) else 0))
    wslot = {'l': 0, 'h': 0}
    def q_rdw(kind, i):
        regs = vWL if kind == 'l' else vWH
        hs = 128 if kind == 'l' else 64
        base = (i % 3)*WS
        for k in range(4):
            d = (wl if kind == 'l' else wh)(i, k)
            for h in range(2):
                if k < 3: a = regs[h]; off = base + k*384
                else: a = regs[2]; off = base + h*hs
                fill(f'ds_read_b64_tr_b16 v[{d+2*h}:{d+2*h+1}], v{a} offset:{off}', lds=True, dst=(d if h == 1 else None), after=lastuse.get(d, -1))
        if i == 0 and kind == 'h':
            for a in regs: fill(f'v_sub_u32 v{a}, v{a}, v18')
        if i == 2:
            for a in regs: fill(f'v_add_u32 v{a}, {3*WS}, v{a}')
        if i == 4 and kind == 'h':
            for a in regs: fill(f'v_add_u32 v{a}, v19, v{a}')
    cvn = [0]
    def q_out(kind, idx):
        key = (kind, idx)
        c = al(idx) if kind == 'l' else ah(idx)
        t = vCV + 2*(cvn[0] % 2); cvn[0] += 1
        fill(f'v_cvt_pk_bf16_f32 v{t}, v{c}, v{c+1}', after=lastacc[key], dist=8)
        fill(f'v_cvt_pk_bf16_f32 v{t+1}, v{c+2}, v{c+3}', after=lastacc[key], dist=8, frees=c)
        if kind == 'l': fill(f'ds_write_b64 v{vSL}, v[{t}:{t+1}] offset:{idx*SROW}', lds=True, wr=True)
        else: fill(f'ds_write_b64 v{vSH}, v[{t}:{t+1}] offset:{2*idx*SROW}', lds=True, wr=True)
    def q_bar(after, drain):
        fill('s_barrier', bar=True, after=after, wr=drain)
    done_units = set()
    pending_out = []
    def note_done(kind, r, i):
        done_units.add((kind, r, i))
        if kind == 'l':
            o = r-i
            if all(('l', o+t, t) in done_units for t in range(5)): pending_out.append(('l', o))
        else:
            u = (r-i)//2
            top = 6 if 2*u+1 < HH else 5
            if all(('h', 2*u+t, t) in done_units for t in range(top)): pending_out.append(('h', u))
    nfl = [0]; lastchk = [-1]; timed = {}
    plan = [it for it in plan0 if not (it[0] == 'steady' and it[1] > HH+3)]
    for n, it in enumerate(plan):
        if it[0] == 'bar': q_bar(len(M)-1, 'all' if 'w4' in it[1] else 'w')
        elif it[0] == 'flag':
            nfl[0] += 1
            timed[max(len(M)-1-A.flead, lastchk[0]+1)] = dict(txt=f'ds_read_b32 v23, v22 offset:{64-4*nfl[0]}', lds=True, dst='flag', after=-1, dist=0, bar=False, wr=False, frees=None)
            fill(nfl[0], bar='chk', after=len(M)-1)
            lastchk[0] = len(M)-1
        elif it[0] == 'rdx':
            for k in range(4): q_rdx(it[1], it[2], k)
        elif it[0] == 'rdw': q_rdw(it[1], it[2])
        elif it[0] == 'mvisit':
            po = list(pending_out); pending_out.clear()
            for k in range(4):
                for (r, buf, kind, i) in it[1]: add_mfma(kind, r, i, k, bufreg(buf, k))
                if k == 0:
                    for p in po: q_out(*p)
            for (r, buf, kind, i) in it[1]: note_done(kind, r, i)
        else:
            if it[0] == 'visit': r, buf, U = it[1], it[2], it[3]
            else: r, buf, U = it[1], 'x', units(it[1], HH)
            nxt = plan[n+1] if n+1 < len(plan) else None
            reload_row = nxt[1] if (nxt and nxt[0] == 'steady') else None
            po = list(pending_out); pending_out.clear()
            if it[0] == 'steady' and r == 12: cutm = len(M)
            if it[0] == 'steady' and r == HH+3 and not steady_bar(r):
                for p in po: q_out(*p)
                po = []
            for k in range(4):
                for (kind, i) in U: add_mfma(kind, r, i, k, bufreg(buf, k))
                if k == 0:
                    if it[0] == 'steady' and steady_bar(r): q_bar(len(M)-1, 'w')
                if reload_row is not None: q_rdx(reload_row, 'x', k)
                if k == 0:
                    for p in po: q_out(*p)
            for (kind, i) in U: note_done(kind, r, i)
    for p in pending_out: q_out(*p)
    q_bar(len(M)-1, 'w')
    assert len(M) == (424 if HH == 13 else 384), len(M)

    class T: issued = 0; done = 0; slot = 0; lastw = 0; t = 0; pipe = 0; ldsq = 0
    opready = {0: 0}
    LAT = A.lat
    regop = {}; mslot = {}; freed = set(); nbar = [0]
    def ee(s): e(s); T.slot += 1; T.t += 4
    def waitop(k):
        if k > T.done:
            n = min(14, T.issued - k)
            ee(f's_waitcnt lgkmcnt({n})'); T.done = T.issued - n
    fi = [0]
    def emit_f(mi):
        f = F[fi[0]]
        assert f['after'] < mi, (f, mi)
        if f['dist'] and f['after'] >= 0:
            gap = T.slot - mslot[f['after']] - 1
            if gap < f['dist']:
                e(f"s_nop {f['dist']-gap-1}"); T.slot += f['dist']-gap
        if f['bar'] == 'chk':
            waitop(regop['flag'])
            ee("v_cmp_eq_u32 vcc, 0, v23")
            ee(f"s_cbranch_vccz L_spin{f['txt']}")
            lab(f"L_back{f['txt']}")
            if A.stamps == 'all': stamp()
        elif f['bar']:
            waitop(T.issued if f['wr'] == 'all' else T.lastw)
            ee('s_barrier')
            if A.stamps == 'all' or str(nbar[0]) in A.stamps.split(','): stamp()
            nbar[0] += 1
        else:
            ee(f['txt'])
            if f['lds']:
                T.issued += 1
                T.ldsq = max(T.t + LAT, T.ldsq + (16 if 'b128' in f['txt'] else 8))
                opready[T.issued] = T.ldsq
                if f['dst'] is not None: regop[f['dst']] = T.issued
                if f['wr']: T.lastw = T.issued
            if f['frees'] is not None: freed.add(f['frees'])
        fi[0] += 1
    def ready(f, mi):
        if f['after'] >= mi: return False
        if f['dist'] and f['after'] >= 0 and T.slot - mslot[f['after']] - 1 < f['dist']: return False
        return True
    prod = []
    accbusy = {}
    for mi, m in enumerate(M):
        if mi == cutm:
            ee(f's_cmp_ge_u32 s{sSEG}, 8'); ee(f's_cbranch_scc0 L_tail13'); cutline = len(out)
        needidx = -1
        for j in range(fi[0], len(F)):
            if F[j]['after'] >= mi: break
            if F[j]['dst'] in (m['a'], m['b']): needidx = j
            if m['first'] and m['c'] in accbusy and F[j]['frees'] == m['c']: needidx = max(needidx, j)
        while fi[0] <= needidx: emit_f(mi)
        if m['first']:
            if m['c'] in accbusy: assert m['c'] in freed, m
            freed.discard(m['c']); accbusy[m['c']] = 1
        kop = max(regop.get(m['a'], 0), regop.get(m['b'], 0))
        while opready[kop] > T.t + 4 and fi[0] < len(F) and ready(F[fi[0]], mi) and not F[fi[0]]['bar'] and T.issued - kop < 14:
            emit_f(mi)
        waitop(kop)
        T.t = max(T.t, opready[kop], T.pipe)
        mslot[mi] = T.slot
        T.pipe = T.t + 16
        ee(m['txt']); T.t += 4
        nf = 0
        if mi in timed:
            F.insert(fi[0], timed[mi]); emit_f(mi+1); nf += 1
        while fi[0] < len(F) and nf < (A.rampfill if mi < 130 else A.maxfill) and ready(F[fi[0]], mi+1):
            emit_f(mi+1); nf += 1
    while fi[0] < len(F): emit_f(len(M))
    finish()
    return cutline

base = len(out); st0 = nstamp[0]
c13 = gen_compute(13, plan); L13 = out[base:]; del out[base:]
nstamp[0] = st0
c12 = gen_compute(12, plan); L12 = out[base:]; del out[base:]
assert c13 == c12 and L13[:c13-base] == L12[:c12-base]
out.extend(L12)
lab('L_tail13')
out.extend(L13[c13-base:])

if DIAG:
    lab('L_diag')
    e('s_getreg_b32 s3, hwreg(HW_REG_XCC_ID)')
    e('s_getreg_b32 s33, hwreg(HW_REG_HW_ID)')
    e('s_waitcnt lgkmcnt(0)')
    e('s_mov_b32 s12, s10'); e('s_and_b32 s13, s11, 0xffff'); e('s_mov_b32 s14, 0x100000'); e('s_mov_b32 s15, 0x20000')
    e(f's_mul_i32 s4, s2, 8'); e(f's_add_u32 s4, s4, s{sWAVE}'); e('s_lshl_b32 s4, s4, 8')
    regs = [3,33,36,37,38,39] + list(range(sSTAMP, sSTAMP+56))
    e('v_mov_b32 v2, 0')
    for j,rg in enumerate(regs):
        e(f'v_writelane_b32 v2, s{rg}, {j}')
    e('v_lshlrev_b32 v3, 2, v1')
    e('s_nop 4')
    e('buffer_store_dword v2, v3, s[12:15], s4 offen')
    e('s_waitcnt vmcnt(0)')
lab('L_end')
e('s_endpgm')
tail = '''.section .rodata,"a"
.p2align 6
.amdhsa_kernel standalone__grouped__vision_kernel
  .amdhsa_next_free_vgpr 256
  .amdhsa_next_free_sgpr 96
  .amdhsa_accum_offset 256
  .amdhsa_group_segment_fixed_size 0
  .amdhsa_kernarg_size 40
  .amdhsa_user_sgpr_count 2
  .amdhsa_user_sgpr_kernarg_segment_ptr 1
  .amdhsa_system_sgpr_workgroup_id_x 1
.end_amdhsa_kernel
'''
print(hdr); print('\n'.join(out)); print(tail)
```

```python
import sys, argparse
ap = argparse.ArgumentParser()
ap.add_argument('--diag', action='store_true')
ap.add_argument('--stamps', default='all')
ap.add_argument('--st', default='sc0 sc1')
ap.add_argument('--ld', default='nt')
ap.add_argument('--ldw', default='')
ap.add_argument('--look', type=int, default=36)
ap.add_argument('--plan', default='E6')
ap.add_argument('--stl', default=None)
ap.add_argument('--look2', type=int, default=20)
ap.add_argument('--pre', default='')
ap.add_argument('--nocpf', action='store_true')
ap.add_argument('--pfirst', type=int, default=1)
ap.add_argument('--pads', type=int, default=1)
ap.add_argument('--padnop', type=int, default=0)
ap.add_argument('--bpos', type=int, default=12)
ap.add_argument('--split', type=int, default=1)
ap.add_argument('--mon', action='store_true')
ap.add_argument('--sync', default='fffffff')
ap.add_argument('--flead', type=int, default=4)
ap.add_argument('--prio', type=int, default=0)
ap.add_argument('--rdlag', type=int, default=1)
ap.add_argument('--maxfill', type=int, default=1)
ap.add_argument('--stream', default=None)
ap.add_argument('--rt', action='store_true')
ap.add_argument('--lat', type=int, default=70)
ap.add_argument('--rampfill', type=int, default=1)
A = ap.parse_args()
DIAG = A.diag
out = []
def e(s): out.append('    ' + s)
def lab(s): out.append(s + ':')

XROW = 43008; XBYTES = 224*XROW; WBYTES = 115200
WI = 23040; WS = 23168; RS = 3840
XB = 0
WB = 12*RS + 256
SB = WB + WS
FLG = WB + WI + 112
SPX = 208; SROW = 16*SPX
OOR = 0x40000
LDS = WB + 5*WS + 384
XSH = 2*XROW + 384
WSH = 512
assert WB % 256 == 0

sX, sW, sO = 12, 16, 20
sROW0, sCOL0, sSEG, sWAVE, sG, sT0, sT1, sT2 = 24, 25, 26, 27, 28, 29, 30, 31
sK = 32; sSOF = 33; sTYP = 34; sOB = 35
sSTAMP = 40
nstamp = [0]
def stamp():
    if DIAG:
        e(f"{'s_memrealtime' if A.rt else 's_memtime'} s[{sSTAMP+2*nstamp[0]}:{sSTAMP+2*nstamp[0]+1}]")
        nstamp[0] += 1
def finish():
    if DIAG:
        stamp()
        e('s_waitcnt vmcnt(0)')
        stamp()
        for z in range(nstamp[0], 28): e(f's_mov_b64 s[{sSTAMP+2*z}:{sSTAMP+2*z+1}], 0')
        e('s_memrealtime s[38:39]')
        e('s_branch L_diag')
    else:
        e('s_endpgm')

def L(*t): return [('l', i) for i in t]
def H(*t): return [('h', i) for i in t]
BUF = {0:'wh2', 1:'wh3', 2:'wl4', 3:'wh4', 4:'wh5', 5:'x'}
def mv(*u): return ('mvisit', [(r, BUF[r], k, t) for (k, r, t) in u])
def l(t, *rows): return [('l', r, t) for r in rows]
def h(t, *rows): return [('h', r, t) for r in rows]
def rdx(*rows): return [('rdx', r, BUF[r]) for r in rows]
if A.plan == 'E6':
    stream = 'x0 x1 x2 x3 x4 x5 p w0 w1 w2 w3 w4 x6 x7 x8 x9 x10 x11 x12 x13 x14 x15 x16'
    plan = [
     ('bar', ['x5'], []), *rdx(0,1,2,3,4,5),
     ('bar', ['w0'], []), ('rdw','l',0), ('rdw','h',0),
     mv(*l(0,0,1,2,3,4)),
     ('flag', ['w1'], []), ('rdw','l',1), ('rdw','h',1),
     mv(*h(0,0,2,4), *l(0,5)),
     mv(*l(1,1,2,3)),
     ('flag', ['w2'], []), ('rdw','l',2), ('rdw','h',2),
     mv(*h(1,1,3,5), *l(1,4,5)),
     mv(*l(2,2,3)),
     ('flag', ['w3'], []), ('rdw','l',3), ('rdw','h',3),
     mv(*h(2,2,4), *l(2,4,5)),
     mv(*l(3,3), *h(3,3)),
     ('bar', ['w4'], []), ('rdw','l',4), ('rdw','h',4),
     mv(*l(3,4,5), *h(3,5)),
     mv(*l(4,4), *h(4,4)),
     ('rdw','h',5),
     ('bar', ['x6'], []),
     ('visit',5,'x',L(4)+H(5)),
    ]
    first_steady = 6
elif A.plan == 'E5':
    stream = 'x0 x1 x2 x3 x4 p w0 w1 w2 w3 x5 w4 x6 x7 x8 x9 x10 x11 x12 x13 x14 x15 x16'
    plan = [
     ('bar', ['x4'], []), *rdx(0,1,2,3,4),
     ('bar', ['w0'], []), ('rdw','l',0), ('rdw','h',0),
     mv(*l(0,0,1,2,3,4)),
     ('flag', ['w1'], []), ('rdw','l',1), ('rdw','h',1),
     mv(*h(0,0,2,4)),
     mv(*l(1,1,2,3)),
     ('flag', ['w2'], []), ('rdw','l',2), ('rdw','h',2),
     mv(*h(1,1,3), *l(1,4)),
     mv(*l(2,2,3)),
     ('flag', ['w3'], []), ('rdw','l',3), ('rdw','h',3),
     mv(*h(2,2,4), *l(2,4)),
     mv(*l(3,3), *h(3,3)),
     ('flag', ['x5'], []), *rdx(5),
     mv(*l(3,4)),
     ('visit',5,'x',L(1,0)+H(1)),
     ('bar', ['w4','x6'], []), ('rdw','l',4), ('rdw','h',4),
     ('visit',5,'x',L(3,2)+H(3)),
     mv(*l(4,4), *h(4,4)),
     ('rdw','h',5),
     ('visit',5,'x',L(4)+H(5)),
    ]
    first_steady = 6
planB = [('bar', ['w0'], []), ('rdw','l',0), ('rdw','h',0), ('bar', ['x5'], []), ('rdxm', [0,1,2,3,4]), *rdx(5)] + plan[10:]
assert plan[10][0] == 'mvisit' and plan[9] == ('rdw','h',0), plan[9:11]
if A.pre: plan = [('bar', [t], []) for t in A.pre.split()] + plan
if A.stream: stream = A.stream
def units(r, HH=13):
    his = [('h', i) for i in range(5, -1, -1) if (r-i) % 2 == 0 and 0 <= r-i <= HH-1]
    los = [('l', i) for i in range(4, -1, -1) if 0 <= r-i <= HH-1]
    return los[:1] + his[:1] + los[1:] + his[1:]
for r in range(first_steady, 17):
    plan.append(('steady', r)); planB.append(('steady', r))

hdr = f'''; grouped 5x5 conv, NHWC bf16, 224x224x96, G=4.  generated by dev/gen10.py
; @launch grid=(252,1,1) block=(512,1,1) lds={LDS}
.amdgcn_target "amdgcn-amd-amdhsa--gfx950"
.text
.p2align 12
.globl standalone__grouped__vision_kernel
.p2align 8
.type standalone__grouped__vision_kernel,@function
standalone__grouped__vision_kernel:'''

if DIAG: e('s_memrealtime s[36:37]')
stamp()
e('s_load_dwordx4 s[4:7], s[0:1], 0')
e('s_load_dwordx2 s[8:9], s[0:1], 16')
if DIAG: e('s_load_dwordx2 s[10:11], s[0:1], 32')
e('v_lshrrev_b32 v2, 6, v0')
e('v_and_b32 v1, 63, v0')
e(f'v_readfirstlane_b32 s{sWAVE}, v2')
e('s_cmp_ge_u32 s2, 252')
e('s_cbranch_scc1 L_end')
e(f's_cmp_ge_u32 s{sWAVE}, 4')
e('s_cbranch_scc1 L_rolecomp')
e(f's_cmp_lg_u32 s{sWAVE}, 0')
e('s_cbranch_scc1 L_rolestore')
st_common = nstamp[0]
def tile_decode_l():
    return ['s_and_b32 s3, s2, 7',
    f's_lshl_b32 s{sT1}, s3, 5',
    f's_add_u32 s{sT0}, s{sK}, s{sT1}',
    f's_max_u32 s{sT1}, s3, 4',
    f's_sub_u32 s{sT1}, s{sT1}, 4',
    f's_sub_u32 s{sT0}, s{sT0}, s{sT1}',
    f's_mul_i32 s{sSEG}, s{sT0}, 4682',
    f's_lshr_b32 s{sSEG}, s{sSEG}, 16',
    f's_lshr_b32 s{sTYP}, 0xaaaa, s{sSEG}',
    f's_and_b32 s{sTYP}, s{sTYP}, 1']
def tile_decode():
    for x in tile_decode_l(): e(x)
def rowcol_l():
    return [f's_mul_i32 s3, s{sSEG}, 14',
    f's_sub_u32 s{sCOL0}, s{sT0}, s3',
    f's_lshl_b32 s{sCOL0}, s{sCOL0}, 4',
    f's_mul_i32 s{sROW0}, s{sSEG}, 12',
    f's_lshr_b32 s3, s{sSEG}, 1',
    f's_add_u32 s{sROW0}, s{sROW0}, s3',
    f's_mul_i32 s{sSOF}, s{sROW0}, {XROW}']
def steady_bar(r):
    if r == 6: return (['x7'], [])
    if r % 2 == 1:
        return ([f'x{q}' for q in (r+1, r+2) if q <= 16], [r-7, r-6])
    return None
bars = []
for it in plan:
    if it[0] == 'bar': bars.append((it[1], [], 'b'))
    elif it[0] == 'flag': bars.append((it[1], [], 'f'))
    elif it[0] == 'steady' and steady_bar(it[1]): bars.append(steady_bar(it[1]) + ('b',))
bars += [([], [10, 11, 12], 'b')]

lab('L_roleload')
e('s_getpc_b64 s[22:23]')
lab('L_pc')
e(f's_lshr_b32 s{sK}, s2, 3')
e(f's_and_b32 s{sT1}, s{sK}, 7')
e(f's_lshl_b32 s{sT1}, s{sT1}, 11')
e(f'v_lshl_add_u32 v3, v1, 7, s{sT1}')
e('v_min_u32 v3, L_end-L_pc, v3')
e('s_mov_b64 exec, 0xffff')
e('global_load_dword v4, v3, s[22:23]' if not A.nocpf else 's_nop 0')
e('s_mov_b64 exec, -1')
vWP = 6
vXD = [8, 9, 10, 11]
vE = [44, 45, 46]; vOd = [47, 48, 49]; vM = 50
sWO = 23; sCNT = 22; sNR = 21; sXM = 20; sFM = 36 if not DIAG else 96
assert A.plan == 'E6'
tile_decode()
for x in rowcol_l(): e(x)
e(f's_mul_i32 s3, s{sCOL0}, 192')
e(f's_add_u32 s{sSOF}, s{sSOF}, s3')
e(f's_cmp_eq_u32 s{sCOL0}, 0')
e(f's_cselect_b32 s{sT1}, 24, 0')
e(f's_cmpk_eq_u32 s{sCOL0}, 208')
e(f's_cselect_b32 s{sT2}, 24, 48')
e(f'v_mul_u32_u24 v52, {WS}, v1')
e(f'v_add_u32 v52, {FLG}, v52')
e('ds_write_b32 v52, v52')
e('v_bfrev_b32 v52, 1')
e(f'v_cmp_gt_u32 vcc, s{sT1}, v1')
e('v_add_u32 v2, 16, v1')
e('v_lshrrev_b32 v2, 6, v2')
e('v_xor_b32 v2, v2, v1')
e(f'v_lshlrev_b32 v{vXD[0]}, 4, v2')
e(f'v_cndmask_b32 v{vXD[0]}, v{vXD[0]}, v52, vcc')
e(f'v_cmp_le_u32 vcc, s{sT2}, v1')
e('v_lshrrev_b32 v2, 5, v1')
e('v_add_u32 v2, 1, v2')
e('v_xor_b32 v2, v2, v1')
e(f'v_lshlrev_b32 v{vXD[1]}, 4, v2')
e('v_add_u32 v2, 0xb0, v1')
e('v_lshrrev_b32 v2, 6, v2')
e('v_xor_b32 v2, v2, v1')
e(f'v_lshlrev_b32 v{vXD[2]}, 4, v2')
e(f'v_lshlrev_b32 v{vXD[3]}, 4, v1')
e(f'v_cndmask_b32 v{vXD[3]}, v{vXD[3]}, v52, vcc')
e(f's_mov_b32 s{sX+3}, 0x20000')
e(f's_mov_b32 s{sW+3}, 0x20000')
e(f's_mov_b32 s{sW+2}, {WBYTES+WSH}')
e(f's_mov_b32 s{sNR}, {XBYTES+XSH}')
e(f's_lshl_b32 s{sT1}, s{sK}, 12')
e(f's_addk_i32 s{sT1}, {WSH}')
e(f'v_lshl_add_u32 v{vWP}, v1, 7, s{sT1}')
e(f's_mov_b32 m0, {XB}')
e(f's_cmp_eq_u32 s{sSEG}, 0')
e(f's_cselect_b32 s{sX+2}, 0, s{sNR}')
if A.pfirst: e('s_mov_b32 exec_hi, 0')
e('s_waitcnt lgkmcnt(0)')
stamp()
def wsrd():
    e(f's_sub_u32 s{sW}, s6, {WSH}'); e(f's_subb_u32 s{sW+1}, s7, 0'); e(f's_and_b32 s{sW+1}, s{sW+1}, 0xffff')
    e(f'buffer_load_dword v4, v{vWP}, s[{sW}:{sW+3}], 0 offen')
    e('s_mov_b32 exec_hi, -1')
if A.pfirst: wsrd()
e(f's_sub_u32 s{sX}, s4, {XSH}'); e(f's_subb_u32 s{sX+1}, s5, 0'); e(f's_and_b32 s{sX+1}, s{sX+1}, 0xffff')
def xrow():
    for t in range(4):
        e(f'buffer_load_dwordx4 v{vXD[t]}, s[{sX}:{sX+3}], s{sSOF} offen offset:{1024*t} {A.ld} lds')
    e(f's_addk_i32 m0, {RS}')
    e(f's_add_u32 s{sSOF}, s{sSOF}, {XROW}')
def xloop(name, end):
    lab(name)
    xrow(); xrow()
    e(f's_mov_b32 s{sX+2}, s{sNR}')
    e(f's_cmpk_lt_u32 m0, {XB+end*RS}')
    e(f's_cbranch_scc1 {name}')
if A.split:
    e(f's_cmp_eq_u32 s{sTYP}, 0')
    e('s_cbranch_scc1 L_pat')
xloop('L_xa', 6)
if A.split:
    e(f's_cmp_lg_u32 s{sTYP}, 0')
    e('s_cbranch_scc1 L_pat')
    e(f's_mov_b32 m0, {WB + A.split*WS}')
    e('s_waitcnt vmcnt(24)')
    e('s_barrier')
    if DIAG: stamp(); nstamp[0] -= 1
    e('s_branch L_wl')
    lab('L_pat')
e(f's_movk_i32 s{sT1}, -24')
e(f's_movk_i32 s{sT2}, -46')
e(f's_movk_i32 s3, 171')
e('v_add_u32 v43, 32, v1')
e('v_mov_b32 v40, v1')
for ph in range(3):
    if ph: e('v_add_u32 v40, 64, v40')
    for x in ['v_mul_u32_u24 v42, s3, v40', 'v_lshrrev_b32 v42, 12, v42', f'v_mad_i32_i24 v41, v42, s{sT1}, v40',
        'v_lshrrev_b32 v42, 1, v41', 'v_add_u32 v42, v42, v41', f'v_mad_i32_i24 v51, v41, 3, s{sT2}', 'v_min_u32 v42, v42, v51',
        'v_sub_u32 v41, v43, v41', f'v_add_lshl_u32 v{vE[ph]}, v41, v42, 4', 'v_add_u32 v51, 12, v42', 'v_add_u32 v42, -12, v42',
        'v_min_u32 v42, v42, v51', f'v_add_lshl_u32 v{vOd[ph]}, v41, v42, 4']: e(x)
    if ph == 1: e('v_cmp_gt_u32 vcc, 32, v1')
e(f'v_cndmask_b32 v{vM}, v{vOd[1]}, v{vE[1]}, vcc')
e(f'v_cndmask_b32 v53, v52, v{vE[1]}, vcc')
e(f's_mov_b32 m0, {WB}')
e(f's_mov_b32 s{sWO}, 0')
wpat = [vE[0], vE[1], vE[2], vE[0], vM, vOd[2], vOd[0], vOd[1], vOd[2]]
e(f's_mov_b32 s{sCNT}, 0')
e(f's_cmp_lg_u32 s{sTYP}, 0')
e(f's_cselect_b32 s{sXM}, 6, {(1 << (A.split+1)) if A.split else 6}')
e(f's_cselect_b32 s{sFM}, 9, {A.split if A.split else 9}')
lab('L_wl')
for n in range(23):
    if n == A.bpos:
        e(f's_bitcmp0_b32 s{sXM}, s{sCNT}')
        e('s_cbranch_scc1 L_wn')
        e(f's_waitcnt vmcnt({23+n})')
        e('s_barrier')
        if DIAG:
            e(f's_cmp_ge_u32 s{sCNT}, 2'); e('s_cbranch_scc1 L_wd1'); stamp(); e('s_branch L_wn'); lab('L_wd1'); stamp()
        lab('L_wn')
    e(f'buffer_load_dwordx4 v{wpat[n%9] if n < 22 else 53}, s[{sW}:{sW+3}], s{sWO} offen offset:{1024*(n%4)} {A.ldw} lds')
    if n % 4 == 3:
        e('s_addk_i32 m0, 4096'); e(f's_addk_i32 s{sWO}, 4096')
e(f's_addk_i32 m0, {WS-5*4096}')
e(f's_addk_i32 s{sWO}, {WI-5*4096}')
e(f's_add_u32 s{sCNT}, s{sCNT}, 1')
if A.split:
    e(f's_cmp_eq_u32 s{sCNT}, s{sFM}')
    e(f's_cselect_b32 m0, {XB}, m0')
    e('s_cbranch_scc1 L_xa')
e(f's_cmp_lt_u32 s{sCNT}, 5')
e('s_cbranch_scc1 L_wl')
e(f's_mov_b32 m0, {XB+6*RS}')
e('s_nop 0')
xloop('L_xb', 12)
issued = 12
first = True
for need, rows, kind in bars[2:]:
    if kind == 'f': continue
    if not need:
        if DIAG: e('s_barrier')
        break
    if 'w4' in need: last = 5
    else:
        last = max(int(n[1:]) for n in need)
        while issued < 17 and 4*(issued - last) <= A.look2:
            if issued == 14:
                e(f's_cmp_lt_u32 s{sSEG}, 17'); e(f's_cselect_b32 s{sX+2}, s{sNR}, 0')
            if issued == 16:
                e(f's_cmp_lg_u32 s{sTYP}, 0'); e(f's_cselect_b32 s{sX+2}, s{sNR}, 0')
            xrow()
            issued += 1
    cntv = 4*(issued - 1 - last)
    e(f's_waitcnt vmcnt({cntv})')
    if cntv == 0 and issued == 17 and not DIAG: break
    e('s_barrier')
    stamp()
finish()

nstamp[0] = st_common
lab('L_rolestore')
if A.pads:
    e('s_mov_b64 exec, 0')
    e(f's_cmp_eq_u32 s{sWAVE}, 2')
    e('s_cbranch_scc1 L_padc')
    e(f's_cmp_eq_u32 s{sWAVE}, 1')
    e('s_cbranch_scc1 L_padb')
lab('L_padret')
e('s_mov_b64 exec, -1')
vL16 = 5; vRA = 6; vSD = 8
e(f's_lshr_b32 s{sK}, s2, 3')
tile_decode()
for x in rowcol_l(): e(x)
e(f's_mul_i32 s3, s{sCOL0}, 192')
e(f's_add_u32 s{sOB}, s{sSOF}, s3')
e(f's_sub_u32 s3, s{sWAVE}, 1')
e('s_lshl_b32 s3, s3, 6')
e('v_add_u32 v2, s3, v1')
e(f'v_lshlrev_b32 v{vL16}, 4, v2')
e('v_mul_u32_u24 v3, 171, v2')
e('v_lshrrev_b32 v3, 11, v3')
e('v_add_u32 v2, v2, v3')
e(f'v_lshlrev_b32 v{vRA}, 4, v2')
e(f'v_add_u32 v{vRA}, {SB}, v{vRA}')
e(f's_mov_b32 s{sO+3}, 0x20000'); e(f's_mov_b32 s{sO+2}, {XBYTES}')
e('s_waitcnt lgkmcnt(0)')
e(f's_mov_b32 s{sO}, s8'); e(f's_and_b32 s{sO+1}, s9, 0xffff')
stamp()
nb = 0
monn = [0]
for need, rows, kind in bars:
    if kind == 'f':
        if DIAG and A.mon:
            monn[0] += 1
            e(f'v_mov_b32 v40, {FLG+WS}')
            e('s_mov_b32 s19, 0x10000')
            lab(f'L_mon{monn[0]}')
            e('s_sub_u32 s19, s19, 1'); e(f's_cbranch_scc1 L_mox{monn[0]}')
            e(f'ds_read_b32 v41, v40 offset:{(monn[0]-1)*WS}'); e('s_waitcnt lgkmcnt(0)'); e(f'v_cmp_eq_u32 vcc, 0, v41'); e(f's_cbranch_vccz L_mon{monn[0]}')
            lab(f'L_mox{monn[0]}')
            stamp()
        continue
    e('s_barrier')
    if rows: stamp()
    for n, o in enumerate(rows):
        d = vSD + 12*(nb % 2) + 4*n
        e(f'ds_read_b128 v[{d}:{d+3}], v{vRA} offset:{o*SROW}')
    for n, o in enumerate(rows):
        d = vSD + 12*(nb % 2) + 4*n
        if o == 12:
            e(f's_cmp_eq_u32 s{sTYP}, 0')
            e('s_cbranch_scc1 L_fins')
        e(f's_add_u32 s3, s{sOB}, {o*XROW}')
        e(f's_waitcnt lgkmcnt({len(rows)-1-n})')
        fl = A.st if (A.stl is None or o < 10) else A.stl
        e(f'buffer_store_dwordx4 v[{d}:{d+3}], v{vL16}, s[{sO}:{sO+3}], s3 offen {fl}')
    if rows: nb += 1
lab('L_fins')
finish()

nstamp[0] = st_common
out.append('.p2align 6')
lab('L_rolecomp')
vQ, vP = 2, 3
vXA = [4, 5, 6, 7]
vWL = [8, 9, 10]; vWH = [11, 20, 21]
vSL, vSH = 12, 13
vCV = 14
vT0, vT1, vT2, vT3 = 14, 15, 16, 17
vXF = 24
vAL = 40
vAH = 64
vWFL = 80
vWFH = 160
e(f's_lshr_b32 s{sK}, s2, 3')
tile_decode()
e(f's_sub_u32 s{sG}, s{sWAVE}, 4')
if A.prio: e(f's_setprio {A.prio}')
e(f'v_lshrrev_b32 v{vQ}, 4, v1')
e(f'v_and_b32 v{vP}, 15, v1')
e(f's_mul_i32 s{sT1}, s{sG}, 3')
e(f'v_add_u32 v{vT0}, v{vP}, v{vQ}')
e(f'v_bfe_u32 v{vT1}, v{vT0}, 2, 2')
e(f'v_mul_u32_u24 v{vT0}, 192, v{vT0}')
for k in range(3):
    e(f's_add_u32 s3, s{sT1}, {k}')
    e(f'v_xor_b32 v{vT2}, s3, v{vT1}')
    e(f'v_lshl_add_u32 v{vXA[k]}, v{vT2}, 4, v{vT0}')
e(f'v_add_u32 v{vT0}, 4, v{vP}')
e(f'v_bfe_u32 v{vT1}, v{vT0}, 2, 2')
e(f'v_mul_u32_u24 v{vT0}, 192, v{vT0}')
e(f'v_add_u32 v{vT2}, s{sT1}, v{vQ}')
e(f'v_xor_b32 v{vT2}, v{vT2}, v{vT1}')
e(f'v_lshl_add_u32 v{vXA[3]}, v{vT2}, 4, v{vT0}')
e(f'v_cmp_eq_u32 vcc, 3, v{vQ}')
e(f'v_mov_b32 v{vT3}, {OOR}')
e(f's_mul_i32 s{sT0}, s{sG}, 1152')
e(f's_add_u32 s{sT0}, s{sT0}, {WB}')
e(f'v_cndmask_b32 v{vXA[3]}, v{vXA[3]}, v{vT3}, vcc')
e(f'v_mul_u32_u24 v{vT0}, 4608, v{vQ}')
e(f'v_add_u32 v{vT0}, s{sT0}, v{vT0}')
e(f'v_min_u32 v{vT1}, 2, v{vQ}')
e(f'v_mul_u32_u24 v{vT1}, 384, v{vT1}')
e(f's_add_u32 s{sT0}, s{sT0}, {4*4608}')
e(f'v_add_u32 v{vT1}, s{sT0}, v{vT1}')
e(f'v_lshlrev_b32 v{vT2}, 3, v{vP}')
e(f'v_add_u32 v{vWL[2]}, v{vT1}, v{vT2}')
e(f'v_add_u32 v{vT2}, v{vT0}, v{vT2}')
e(f'v_and_b32 v18, 1, v{vQ}')
e(f'v_lshl_add_u32 v{vWL[0]}, v18, 7, v{vT2}')
e(f'v_xor_b32 v19, 1, v18')
e(f'v_lshl_add_u32 v{vWL[1]}, v19, 7, v{vT2}')
e(f'v_bfe_u32 v{vT2}, v1, 2, 2')
e(f'v_lshlrev_b32 v{vT2}, 4, v{vT2}')
e(f'v_and_b32 v22, 1, v1')
e(f'v_lshl_add_u32 v{vT2}, v22, 3, v{vT2}')
e(f'v_add_u32 v{vT2}, 256, v{vT2}')
e(f'v_bfe_u32 v22, v1, 1, 1')
e(f'v_mul_u32_u24 v23, {OOR}, v22')
e(f'v_add_u32 v{vT2}, v{vT2}, v23')
e(f'v_add_u32 v{vWH[2]}, v{vT1}, v{vT2}')
e(f'v_add_u32 v{vT2}, v{vT0}, v{vT2}')
e(f'v_lshl_add_u32 v{vWH[0]}, v18, 6, v{vT2}')
e(f'v_lshl_add_u32 v{vWH[1]}, v19, 6, v{vT2}')
e(f'v_mul_u32_u24 v18, {OOR+WS}, v22')
e(f'v_xor_b32 v22, 1, v22')
e(f'v_mul_u32_u24 v19, {OOR}, v22')
e(f'v_mov_b32 v22, {FLG+WS}')
e(f'v_mul_u32_u24 v{vT0}, {SPX}, v{vP}')
e(f's_mul_i32 s{sT0}, s{sG}, 48')
e(f's_add_u32 s{sT0}, s{sT0}, {SB}')
e(f'v_add_u32 v{vT0}, s{sT0}, v{vT0}')
e(f'v_lshl_add_u32 v{vSL}, v{vQ}, 3, v{vT0}')
e(f'v_and_b32 v{vT1}, 1, v{vQ}')
e(f'v_lshl_add_u32 v{vSH}, v{vT1}, 3, v{vT0}')
e(f'v_lshrrev_b32 v{vT1}, 1, v{vQ}')
e(f'v_mul_u32_u24 v{vT1}, {SROW}, v{vT1}')
e(f'v_add3_u32 v{vSH}, v{vSH}, v{vT1}, 32')
e('s_waitcnt lgkmcnt(0)')
stamp()
NFLAG = sum(1 for it in plan if it[0] == 'flag')
if NFLAG:
    e('s_mov_b32 s21, 0x40000')
    e(f's_cmp_eq_u32 s{sTYP}, 0')
    e('s_cbranch_scc1 L_go12')
    e('s_branch L_go13')
    for n0 in range(2*NFLAG):
        n = n0 % NFLAG + 1; sfx = f'{n}_{12 + n0//NFLAG}'
        lab(f'L_spin{sfx}')
        e('s_sub_u32 s21, s21, 1')
        e(f's_cbranch_scc1 L_back{sfx}')
        e(f'ds_read_b32 v23, v22 offset:{(n-1)*WS}')
        e('s_waitcnt lgkmcnt(0)')
        e(f'v_cmp_eq_u32 vcc, 0, v23')
        e(f's_cbranch_vccz L_spin{sfx}')
        e(f's_branch L_back{sfx}')

def wl(i, k): return vWFL + (i*4+k)*4
def wh(i, k): return vWFH + (i*4+k)*4
def al(o): return vAL + 4*(o % 6)
def ah(u): return vAH + 4*(u % 4)
def bufreg(buf, k):
    if buf == 'x': return vXF + 4*k
    return (wl if buf[1] == 'l' else wh)(int(buf[2]), k)

def gen_compute(HH, plan0):
    M = []; F = []
    lastuse = {}
    lastacc = {}
    started = set()
    def add_mfma(kind, r, i, k, b):
        if kind == 'l': a = wl(i, k); c = al(r-i); key = ('l', r-i)
        else: a = wh(i, k); c = ah((r-i)//2); key = ('h', (r-i)//2)
        first = key not in started
        started.add(key)
        src = '0' if first else f'v[{c}:{c+3}]'
        M.append(dict(txt=f'v_mfma_f32_16x16x32_bf16 v[{c}:{c+3}], v[{a}:{a+3}], v[{b}:{b+3}], {src}', a=a, b=b, c=c, first=first, key=key))
        lastuse[a] = lastuse[b] = len(M)-1
        lastacc[key] = len(M)-1
    def fill(txt, lds=False, dst=None, after=-1, dist=0, bar=False, wr=False, frees=None):
        F.append(dict(txt=txt, lds=lds, dst=dst, after=after, dist=dist, bar=bar, wr=wr, frees=frees))
    def q_rdx(r, buf, k):
        d = bufreg(buf, k)
        fill(f'ds_read_b128 v[{d}:{d+3}], v{vXA[k]} offset:{r*RS}', lds=True, dst=d, after=lastuse.get(d, -1) + (A.rdlag if (buf == 'x' and r > first_steady and r < 14) else 0))
    wslot = {'l': 0, 'h': 0}
    def q_rdw(kind, i):
        regs = vWL if kind == 'l' else vWH
        hs = 128 if kind == 'l' else 64
        base = (i % 3)*WS
        for k in range(4):
            d = (wl if kind == 'l' else wh)(i, k)
            for h in range(2):
                if k < 3: a = regs[h]; off = base + k*384
                else: a = regs[2]; off = base + h*hs
                fill(f'ds_read_b64_tr_b16 v[{d+2*h}:{d+2*h+1}], v{a} offset:{off}', lds=True, dst=(d if h == 1 else None), after=lastuse.get(d, -1))
        if i == 0 and kind == 'h':
            for a in regs: fill(f'v_sub_u32 v{a}, v{a}, v18')
        if i == 2:
            for a in regs: fill(f'v_add_u32 v{a}, {3*WS}, v{a}')
        if i == 4 and kind == 'h':
            for a in regs: fill(f'v_add_u32 v{a}, v19, v{a}')
    cvn = [0]
    def q_out(kind, idx):
        key = (kind, idx)
        c = al(idx) if kind == 'l' else ah(idx)
        t = vCV + 2*(cvn[0] % 2); cvn[0] += 1
        fill(f'v_cvt_pk_bf16_f32 v{t}, v{c}, v{c+1}', after=lastacc[key], dist=8)
        fill(f'v_cvt_pk_bf16_f32 v{t+1}, v{c+2}, v{c+3}', after=lastacc[key], dist=8, frees=c)
        if kind == 'l': fill(f'ds_write_b64 v{vSL}, v[{t}:{t+1}] offset:{idx*SROW}', lds=True, wr=True)
        else: fill(f'ds_write_b64 v{vSH}, v[{t}:{t+1}] offset:{2*idx*SROW}', lds=True, wr=True)
    def q_bar(after, drain):
        fill('s_barrier', bar=True, after=after, wr=drain)
    done_units = set()
    pending_out = []
    def note_done(kind, r, i):
        done_units.add((kind, r, i))
        if kind == 'l':
            o = r-i
            if all(('l', o+t, t) in done_units for t in range(5)): pending_out.append(('l', o))
        else:
            u = (r-i)//2
            top = 6 if 2*u+1 < HH else 5
            if all(('h', 2*u+t, t) in done_units for t in range(top)): pending_out.append(('h', u))
    nfl = [0]; lastchk = [-1]; timed = {}
    plan = [it for it in plan0 if not (it[0] == 'steady' and it[1] > HH+3)]
    for n, it in enumerate(plan):
        if it[0] == 'bar': q_bar(len(M)-1, 'all' if 'w4' in it[1] else 'w')
        elif it[0] == 'flag':
            nfl[0] += 1
            timed[max(len(M)-1-A.flead, lastchk[0]+1)] = dict(txt=f'ds_read_b32 v23, v22 offset:{(nfl[0]-1)*WS}', lds=True, dst='flag', after=-1, dist=0, bar=False, wr=False, frees=None)
            fill(nfl[0], bar='chk', after=len(M)-1)
            lastchk[0] = len(M)-1
        elif it[0] == 'rdx':
            for k in range(4): q_rdx(it[1], it[2], k)
        elif it[0] == 'rdw': q_rdw(it[1], it[2])
        elif it[0] == 'rdxm':
            for k in range(4):
                for r in it[1]: q_rdx(r, BUF[r], k)
        elif it[0] == 'mvisit':
            po = list(pending_out); pending_out.clear()
            for k in range(4):
                for (r, buf, kind, i) in it[1]: add_mfma(kind, r, i, k, bufreg(buf, k))
                if k == 0:
                    for p in po: q_out(*p)
            for (r, buf, kind, i) in it[1]: note_done(kind, r, i)
        else:
            if it[0] == 'visit': r, buf, U = it[1], it[2], it[3]
            else: r, buf, U = it[1], 'x', units(it[1], HH)
            nxt = plan[n+1] if n+1 < len(plan) else None
            reload_row = nxt[1] if (nxt and nxt[0] == 'steady') else None
            po = list(pending_out); pending_out.clear()
            if it[0] == 'steady' and r == 12: cutm = len(M)
            if it[0] == 'steady' and r == HH+3 and not steady_bar(r):
                for p in po: q_out(*p)
                po = []
            for k in range(4):
                for (kind, i) in U: add_mfma(kind, r, i, k, bufreg(buf, k))
                if k == 0:
                    if it[0] == 'steady' and steady_bar(r): q_bar(len(M)-1, 'w')
                if reload_row is not None: q_rdx(reload_row, 'x', k)
                if k == 0:
                    for p in po: q_out(*p)
            for (kind, i) in U: note_done(kind, r, i)
    for p in pending_out: q_out(*p)
    q_bar(len(M)-1, 'w')
    assert len(M) == (424 if HH == 13 else 384), len(M)

    class T: issued = 0; done = 0; slot = 0; lastw = 0; t = 0; pipe = 0; ldsq = 0
    opready = {0: 0}
    LAT = A.lat
    regop = {}; mslot = {}; freed = set(); nbar = [0]
    def ee(s): e(s); T.slot += 1; T.t += 4
    def waitop(k):
        if k > T.done:
            n = min(14, T.issued - k)
            ee(f's_waitcnt lgkmcnt({n})'); T.done = T.issued - n
    fi = [0]
    def emit_f(mi):
        f = F[fi[0]]
        assert f['after'] < mi, (f, mi)
        if f['dist'] and f['after'] >= 0:
            gap = T.slot - mslot[f['after']] - 1
            if gap < f['dist']:
                e(f"s_nop {f['dist']-gap-1}"); T.slot += f['dist']-gap
        if f['bar'] == 'chk':
            waitop(regop['flag'])
            ee("v_cmp_eq_u32 vcc, 0, v23")
            ee(f"s_cbranch_vccz L_spin{f['txt']}_{HH}")
            lab(f"L_back{f['txt']}_{HH}")
            if A.stamps == 'all': stamp()
        elif f['bar']:
            waitop(T.issued if f['wr'] == 'all' else T.lastw)
            ee('s_barrier')
            if A.stamps == 'all' or str(nbar[0]) in A.stamps.split(','): stamp()
            nbar[0] += 1
        else:
            ee(f['txt'])
            if f['lds']:
                T.issued += 1
                T.ldsq = max(T.t + LAT, T.ldsq + (16 if 'b128' in f['txt'] else 8))
                opready[T.issued] = T.ldsq
                if f['dst'] is not None: regop[f['dst']] = T.issued
                if f['wr']: T.lastw = T.issued
            if f['frees'] is not None: freed.add(f['frees'])
        fi[0] += 1
    def ready(f, mi):
        if f['after'] >= mi: return False
        if f['dist'] and f['after'] >= 0 and T.slot - mslot[f['after']] - 1 < f['dist']: return False
        return True
    prod = []
    accbusy = {}
    for mi, m in enumerate(M):
        needidx = -1
        for j in range(fi[0], len(F)):
            if F[j]['after'] >= mi: break
            if F[j]['dst'] in (m['a'], m['b']): needidx = j
            if m['first'] and m['c'] in accbusy and F[j]['frees'] == m['c']: needidx = max(needidx, j)
        while fi[0] <= needidx: emit_f(mi)
        if m['first']:
            if m['c'] in accbusy: assert m['c'] in freed, m
            freed.discard(m['c']); accbusy[m['c']] = 1
        kop = max(regop.get(m['a'], 0), regop.get(m['b'], 0))
        while opready[kop] > T.t + 4 and fi[0] < len(F) and ready(F[fi[0]], mi) and not F[fi[0]]['bar'] and T.issued - kop < 14:
            emit_f(mi)
        waitop(kop)
        T.t = max(T.t, opready[kop], T.pipe)
        mslot[mi] = T.slot
        T.pipe = T.t + 16
        ee(m['txt']); T.t += 4
        nf = 0
        if mi in timed:
            F.insert(fi[0], timed[mi]); emit_f(mi+1); nf += 1
        while fi[0] < len(F) and nf < (A.rampfill if mi < 130 else A.maxfill) and ready(F[fi[0]], mi+1):
            emit_f(mi+1); nf += 1
    while fi[0] < len(F): emit_f(len(M))
    finish()

st0 = nstamp[0]
out.append('.p2align 12')
lab('L_go13')
gen_compute(13, plan)
nstamp[0] = st0
out.append('.p2align 6')
lab('L_go12')
gen_compute(12, planB if A.split else plan)

if DIAG:
    lab('L_diag')
    e('s_getreg_b32 s3, hwreg(HW_REG_XCC_ID)')
    e('s_getreg_b32 s33, hwreg(HW_REG_HW_ID)')
    e('s_waitcnt lgkmcnt(0)')
    e('s_mov_b32 s12, s10'); e('s_and_b32 s13, s11, 0xffff'); e('s_mov_b32 s14, 0x100000'); e('s_mov_b32 s15, 0x20000')
    e(f's_mul_i32 s4, s2, 8'); e(f's_add_u32 s4, s4, s{sWAVE}'); e('s_lshl_b32 s4, s4, 8')
    regs = [3,33,36,37,38,39] + list(range(sSTAMP, sSTAMP+56))
    e('v_mov_b32 v2, 0')
    for j,rg in enumerate(regs):
        e(f'v_writelane_b32 v2, s{rg}, {j}')
    e('v_lshlrev_b32 v3, 2, v1')
    e('s_nop 4')
    e('buffer_store_dword v2, v3, s[12:15], s4 offen')
    e('s_waitcnt vmcnt(0)')
lab('L_end')
e('s_endpgm')
tail = '''.section .rodata,"a"
.p2align 6
.amdhsa_kernel standalone__grouped__vision_kernel
  .amdhsa_next_free_vgpr 256
  .amdhsa_next_free_sgpr 100
  .amdhsa_accum_offset 256
  .amdhsa_group_segment_fixed_size 0
  .amdhsa_kernarg_size 40
  .amdhsa_user_sgpr_count 2
  .amdhsa_user_sgpr_kernarg_segment_ptr 1
  .amdhsa_system_sgpr_workgroup_id_x 1
.end_amdhsa_kernel
'''
def isize(l):
    l = l.strip()
    if not l or l.endswith(':') or l.startswith('.'): return 0
    op = l.split()[0]
    if op.startswith(('v_mfma', 'ds_', 'v_cvt_pk', 's_memtime', 's_memrealtime')): return 8
    if op in ('s_waitcnt', 's_barrier', 's_nop', 's_cbranch_vccz', 's_cbranch_scc0', 's_cbranch_scc1', 's_cmp_ge_u32', 'v_cmp_eq_u32', 'v_sub_u32', 's_endpgm', 's_mov_b64', 's_branch'): return 4
    if op == 'v_add_u32': return 4 if l.split(',')[1].strip().startswith('v') else 8
    raise Exception(l)
g = out.index('L_go13:'); off = 0; nxt = 4096; names = ['L_padb', 'L_padc']
i = g+1
while names:
    if out[i] == '.p2align 6': off = (off + 63) // 64 * 64
    if off >= nxt:
        out[i:i] = [names.pop(0) + ':', '    s_cbranch_execz L_padret']
        nxt += 4096; off += 4; i += 2
        continue
    off += isize(out[i]); i += 1
print(hdr); print('\n'.join(out)); print(tail)
```

```python
import sys, argparse
ap = argparse.ArgumentParser()
ap.add_argument('--diag', action='store_true')
ap.add_argument('--stamps', default='all')
ap.add_argument('--st', default='sc0 sc1')
ap.add_argument('--ld', default='nt')
ap.add_argument('--ldw', default='')
ap.add_argument('--look', type=int, default=36)
ap.add_argument('--plan', default='E6')
ap.add_argument('--stl', default=None)
ap.add_argument('--look2', type=int, default=36)
ap.add_argument('--pre', default='')
ap.add_argument('--nocpf', action='store_true')
ap.add_argument('--pfirst', type=int, default=1)
ap.add_argument('--pads', type=int, default=1)
ap.add_argument('--padnop', type=int, default=0)
ap.add_argument('--bpos', type=int, default=12)
ap.add_argument('--split', type=int, default=1)
ap.add_argument('--swap', type=int, default=1)
ap.add_argument('--xpf', type=int, default=1)
ap.add_argument('--stw', type=int, default=4)
ap.add_argument('--w32', type=int, default=1)
ap.add_argument('--chkgap', type=int, default=2)
ap.add_argument('--qcap', type=int, default=130)
ap.add_argument('--lprio', type=int, default=3)
ap.add_argument('--bcap', type=int, default=6)
ap.add_argument('--nopfill', type=int, default=1)
ap.add_argument('--chain', type=int, default=2)
ap.add_argument('--chain0', type=int, default=0)
ap.add_argument('--barpos', type=int, default=5)
ap.add_argument('--b7', type=int, default=1)
ap.add_argument('--look6', type=int, default=0)
ap.add_argument('--dly', type=int, default=2)
ap.add_argument('--pmode', type=int, default=4)
ap.add_argument('--pace', type=int, default=0)
ap.add_argument('--sched', default='2430')
ap.add_argument('--xpf2', type=int, default=0)
ap.add_argument('--xpf3', type=int, default=0)
ap.add_argument('--first', type=int, default=2)
ap.add_argument('--spat', default='')
ap.add_argument('--mon', action='store_true')
ap.add_argument('--sync', default='fffffff')
ap.add_argument('--flead', type=int, default=4)
ap.add_argument('--prio', type=int, default=2)
ap.add_argument('--rdlag', type=int, default=1)
ap.add_argument('--maxfill', type=int, default=1)
ap.add_argument('--stream', default=None)
ap.add_argument('--rt', action='store_true')
ap.add_argument('--lat', type=int, default=70)
ap.add_argument('--rampfill', type=int, default=1)
A = ap.parse_args()
DIAG = A.diag
out = []
def e(s): out.append('    ' + s)
def lab(s): out.append(s + ':')

XROW = 43008; XBYTES = 224*XROW; WBYTES = 115200
WI = 23040; WS = 23168; RS = 3840
XB = 0
WB = 12*RS + 256
SB = WB + WS
FLG = WB + 5*WS + 384
SPX = 208; SROW = 16*SPX
OOR = 0x40000
LDS = FLG + 32 + 256
XSH = 2*XROW + 384
WSH = 512
assert WB % 256 == 0

sX, sW, sO = 12, 16, 20
sROW0, sCOL0, sSEG, sWAVE, sG, sT0, sT1, sT2 = 24, 25, 26, 27, 28, 29, 30, 31
sK = 32; sSOF = 33; sTYP = 34; sOB = 35
sSTAMP = 40
nstamp = [0]
def stamp():
    if DIAG:
        e(f"{'s_memrealtime' if A.rt else 's_memtime'} s[{sSTAMP+2*nstamp[0]}:{sSTAMP+2*nstamp[0]+1}]")
        nstamp[0] += 1
def finish():
    if DIAG:
        stamp()
        e('s_waitcnt vmcnt(0)')
        stamp()
        for z in range(nstamp[0], 28): e(f's_mov_b64 s[{sSTAMP+2*z}:{sSTAMP+2*z+1}], 0')
        e('s_memrealtime s[38:39]')
        e('s_branch L_diag')
    else:
        e('s_endpgm')

def L(*t): return [('l', i) for i in t]
def H(*t): return [('h', i) for i in t]
BUF = {0:'wh2', 1:'wh3', 2:'wl4', 3:'wh4', 4:'wh5', 5:'x'}
def mv(*u): return ('mvisit', [(r, BUF[r], k, t) for (k, r, t) in u])
def l(t, *rows): return [('l', r, t) for r in rows]
def h(t, *rows): return [('h', r, t) for r in rows]
def rdx(*rows): return [('rdx', r, BUF[r]) for r in rows]
if A.plan == 'E6':
    stream = ''
    rest = [
     mv(*l(1,1,2,3,4)),
     ('flag', ['w2'], []), ('rdw','l',2), ('rdw','h',2),
     mv(*h(1,1,3,5), *l(1,5)),
     mv(*l(2,2,3)),
     ('flag', ['w3'], []), ('rdw','l',3), ('rdw','h',3),
     mv(*h(2,2,4), *l(2,4,5)),
     mv(*l(3,3)),
     ('bar', ['w4'], []), ('rdw','l',4),
     mv(*h(3,3), *l(3,4)), ('rdw','h',4),
     mv(*l(3,5), *l(4,4)),
     mv(*h(4,4), *h(3,5)),
     ('rdw','h',5),
     ('bar', ['x6'], []),
     ('visit',5,'x',L(4)+H(5)),
    ]
    plan = [
     ('bar', ['x5'], []), *rdx(0,1,2,3,4,5),
     ('bar', ['w0'], []), ('rdw','l',0), ('rdw','h',0),
     mv(*l(0,0,1,2,3,4)), mv(*h(0,0,2)),
     ('flag', ['w1'], []), ('rdw','l',1), ('rdw','h',1),
     mv(*h(0,4), *l(0,5))] + rest
    planB = [('bar', ['w0'], []), ('rdw','l',0), ('rdw','h',0), ('bar', ['x5'], []), ('rdxm', [0,2,4]), ('rdxm', [1]), ('rdxm', [3,5]),
     mv(('l',0,0),('h',0,0),('l',2,0),('h',2,0),('l',4,0)), mv(*h(0,4), *l(0,1)),
     ('flag', ['w1'], []), ('rdw','l',1), ('rdw','h',1),
     mv(*l(0,3,5))] + rest
    first_steady = 6
elif A.plan == 'E5':
    stream = 'x0 x1 x2 x3 x4 p w0 w1 w2 w3 x5 w4 x6 x7 x8 x9 x10 x11 x12 x13 x14 x15 x16'
    plan = [
     ('bar', ['x4'], []), *rdx(0,1,2,3,4),
     ('bar', ['w0'], []), ('rdw','l',0), ('rdw','h',0),
     mv(*l(0,0,1,2,3,4)),
     ('flag', ['w1'], []), ('rdw','l',1), ('rdw','h',1),
     mv(*h(0,0,2,4)),
     mv(*l(1,1,2,3)),
     ('flag', ['w2'], []), ('rdw','l',2), ('rdw','h',2),
     mv(*h(1,1,3), *l(1,4)),
     mv(*l(2,2,3)),
     ('flag', ['w3'], []), ('rdw','l',3), ('rdw','h',3),
     mv(*h(2,2,4), *l(2,4)),
     mv(*l(3,3), *h(3,3)),
     ('flag', ['x5'], []), *rdx(5),
     mv(*l(3,4)),
     ('visit',5,'x',L(1,0)+H(1)),
     ('bar', ['w4','x6'], []), ('rdw','l',4), ('rdw','h',4),
     ('visit',5,'x',L(3,2)+H(3)),
     mv(*l(4,4), *h(4,4)),
     ('rdw','h',5),
     ('visit',5,'x',L(4)+H(5)),
    ]
    first_steady = 6
if A.pre: plan = [('bar', [t], []) for t in A.pre.split()] + plan
if A.stream: stream = A.stream
def units(r, HH=13):
    his = [('h', i) for i in range(5, -1, -1) if (r-i) % 2 == 0 and 0 <= r-i <= HH-1]
    los = [('l', i) for i in range(4, -1, -1) if 0 <= r-i <= HH-1]
    return los[:1] + his[:1] + los[1:] + his[1:]
for r in range(first_steady, 12):
    plan.append(('steady', r)); planB.append(('steady', r))
def mvb(B, *u): return ('mvisit', [(r, B[r], k, t) for (k, r, t) in u])
def ivb(B, *u): return ('ivisit', [(r, B[r], k, t) for (k, r, t) in u])
B13 = {13:'x', 14:'wl0', 15:'wh0', 16:'wh5'}
tail13 = [('steady', 12), ('next', 13),
     ('rdx',14,'wl0'), ('rdx',15,'wh0'),
     mvb(B13, ('l',13,4), ('h',13,5)),
     ('pub', 0),
     mvb(B13, ('l',13,3), ('l',13,2), ('h',13,3)),
     mvb(B13, ('l',14,4), ('l',14,3), ('h',14,4)),
     mvb(B13, ('h',15,5), ('l',15,4)), ('rdx',16,'wh5'),
     ('pub', 0),
     mvb(B13, ('l',13,1), ('h',13,1), ('l',14,2), ('h',14,2)),
     ivb(B13, ('l',15,3), ('l',16,4), ('h',15,3), ('h',16,4)),
]
B12 = {12:'x', 13:'wh0', 14:'wl0', 15:'wh1'}
tail12 = [('next', 12), ('pub', 0), ('rdx',13,'wh0'),
     mvb(B12, ('l',12,4), ('l',12,3), ('h',12,4)),
     ('rdx',14,'wl0'), ('rdx',15,'wh1'),
     mvb(B12, ('l',13,4), ('h',13,5)),
     ('pub', 0),
     mvb(B12, ('l',12,2), ('h',12,2), ('l',13,3), ('h',13,3)),
     ivb(B12, ('h',14,4), ('h',15,5), ('l',14,4)),
     ('pub1', 10),
     ivb(B12, ('l',12,1), ('l',13,2), ('l',14,3), ('l',15,4)),
]

hdr = f'''; grouped 5x5 conv, NHWC bf16, 224x224x96, G=4.  generated by dev/gen18.py
; @launch grid=(256,1,1) block=(512,1,1) lds={LDS}
.amdgcn_target "amdgcn-amd-amdhsa--gfx950"
.text
.p2align 12
.globl standalone__grouped__vision_kernel
.p2align 8
.type standalone__grouped__vision_kernel,@function
standalone__grouped__vision_kernel:'''

if DIAG: e('s_memrealtime s[36:37]')
stamp()
e('s_load_dwordx4 s[4:7], s[0:1], 0')
e('s_load_dwordx2 s[8:9], s[0:1], 16')
if DIAG: e('s_load_dwordx2 s[10:11], s[0:1], 32')
e('v_lshrrev_b32 v2, 6, v0')
e('v_and_b32 v1, 63, v0')
e(f'v_readfirstlane_b32 s{sWAVE}, v2')
e('s_and_b32 s3, s2, 7')
e(f's_lshr_b32 s{sK}, s2, 3')
e('s_lshl_b32 s3, s3, 5')
e(f's_add_u32 s{sT0}, s{sK}, s3')
e(f's_cmpk_ge_u32 s{sT0}, 252')
e('s_cbranch_scc1 L_end')
e(f's_cmp_ge_u32 s{sK}, 32')
e('s_cbranch_scc1 L_end')
e(f's_cmp_ge_u32 s{sWAVE}, 4')
e('s_cbranch_scc1 L_rolecomp')
e(f's_cmp_lg_u32 s{sWAVE}, 0')
e('s_cbranch_scc1 L_rolestore')
st_common = nstamp[0]
sM = sSEG; sLOW = sROW0; sSTEP = sG
def tile_decode_l():
    return [f's_and_b32 s{sLOW}, s{sT0}, 1',
    f's_cmpk_lt_u32 s{sT0}, 224',
    f's_cselect_b32 s{sTYP}, s{sLOW}, 0']
def tile_decode():
    for x in tile_decode_l(): e(x)
def rowcol_l(dup, dlow):
    return [f's_mul_i32 s{sM}, s{sT0}, 2341',
    f's_lshr_b32 s{sM}, s{sM}, 16',
    f's_mul_i32 s3, s{sM}, 28',
    f's_sub_u32 s{sCOL0}, s{sT0}, s3',
    f's_lshr_b32 s{sCOL0}, s{sCOL0}, 1',
    f's_mul_i32 s{sSOF}, s{sM}, 25',
    f's_cmp_lg_u32 s{sLOW}, 0',
    f's_cselect_b32 s3, {12+dlow}, {12+dup}',
    f's_cselect_b32 s{sSTEP}, 1, -1',
    f's_add_u32 s{sSOF}, s{sSOF}, s3',
    f's_mul_i32 s{sSOF}, s{sSOF}, 14',
    f's_add_u32 s{sSOF}, s{sSOF}, s{sCOL0}',
    f's_mulk_i32 s{sSOF}, 3072',
    f's_mul_i32 s{sSTEP}, s{sSTEP}, {XROW}']
def steady_bar(r):
    if r == 12: return (['x16'], [6, 7])
    if A.b7 == 2: return ([f'x{r+1}'], [r-6, r-5] if r % 2 == 0 else [])
    if A.b7 and r == 6: return (['x7'], [0, 1])
    if A.b7 and r == 7: return (['x8'], [])
    if r % 2 == 0:
        return ([f'x{q}' for q in (r+1, r+2) if q <= 16], [r-6, r-5])
    return None
bars = []
for it in plan:
    if it[0] == 'bar': bars.append((it[1], [], 'b'))
    elif it[0] == 'flag': bars.append((it[1], [], 'f'))
    elif it[0] == 'steady' and steady_bar(it[1]): bars.append(steady_bar(it[1]) + ('b',))
bars += [(['x16'], [6, 7], 'b'), ([], [8, 9], 'b'), ([], [10, 11], 'b'), ([], [12], 'b')]

lab('L_roleload')
if A.lprio: e(f's_setprio {A.lprio}')
e('s_getpc_b64 s[22:23]')
lab('L_pc')
if A.pmode == 4:
    e(f's_bfe_u32 s{sT1}, s{sK}, 0x30001')
else: e(f's_and_b32 s{sT1}, s{sK}, 7')
e(f's_lshl_b32 s{sT1}, s{sT1}, 11')
e(f'v_lshl_add_u32 v3, v1, 7, s{sT1}')
e('v_min_u32 v3, L_end-L_pc, v3')
if A.pmode == 4:
    e(f's_bitcmp1_b32 s{sK}, 0'); e('s_cselect_b32 exec_lo, 0xffff, 1'); e('s_mov_b32 exec_hi, 0')
else: e('s_mov_b64 exec, 0xffff')
e('global_load_dword v4, v3, s[22:23]' if not A.nocpf else 's_nop 0')
e('s_mov_b64 exec, -1')
vWP = 6
vXD = [8, 9, 10, 11]
vE = [44, 45, 46]; vOd = [47, 48, 49]; vM = 50
sWO = 23; sCNT = 22; sNR = 21; sXM = 20; sFM = 36 if not DIAG else 96; sPH = 37 if not DIAG else 97; sFL = 38 if not DIAG else 98
assert A.plan == 'E6'
tile_decode()
for x in rowcol_l(3, 0): e(x)
e(f's_cmp_eq_u32 s{sCOL0}, 0')
e(f's_cselect_b32 s{sT1}, 24, 0')
e(f's_cmp_eq_u32 s{sCOL0}, 13')
e(f's_cselect_b32 s{sT2}, 24, 48')
e(f'v_mov_b32 v54, {FLG}')
e('v_lshl_add_u32 v54, v1, 2, v54')
e('ds_write_b32 v54, v54')
e('v_bfrev_b32 v52, 1')
e(f'v_cmp_gt_u32 vcc, s{sT1}, v1')
e('v_add_u32 v2, 16, v1')
e('v_lshrrev_b32 v2, 6, v2')
e('v_xor_b32 v2, v2, v1')
e(f'v_lshlrev_b32 v{vXD[0]}, 4, v2')
e(f'v_cndmask_b32 v{vXD[0]}, v{vXD[0]}, v52, vcc')
e(f'v_cmp_le_u32 vcc, s{sT2}, v1')
e('v_lshrrev_b32 v2, 5, v1')
e('v_add_u32 v2, 1, v2')
e('v_xor_b32 v2, v2, v1')
e(f'v_lshlrev_b32 v{vXD[1]}, 4, v2')
e('v_add_u32 v2, 0xb0, v1')
e('v_lshrrev_b32 v2, 6, v2')
e('v_xor_b32 v2, v2, v1')
e(f'v_lshlrev_b32 v{vXD[2]}, 4, v2')
e(f'v_lshlrev_b32 v{vXD[3]}, 4, v1')
e(f'v_cndmask_b32 v{vXD[3]}, v{vXD[3]}, v52, vcc')
e(f's_mov_b32 s{sX+3}, 0x20000')
e(f's_mov_b32 s{sW+3}, 0x20000')
e(f's_mov_b32 s{sW+2}, {WBYTES+WSH}')
e(f's_mov_b32 s{sX+2}, {XBYTES+XSH}')
if A.pmode >= 1:
    e(f's_lshr_b32 s{sT1}, s{sK}, 1'); e(f's_lshl_b32 s{sT1}, s{sT1}, 13')
else: e(f's_mul_i32 s{sT1}, s{sK}, {33*128}')
e(f's_addk_i32 s{sT1}, {WSH}')
e(f'v_lshl_add_u32 v{vWP}, v1, 7, s{sT1}')
if A.xpf:
    e('v_lshrrev_b32 v2, 5, v1')
    e(f'v_mul_u32_u24 v2, {XROW-4096}, v2')
    e('v_lshl_add_u32 v2, v1, 7, v2')
    e(f'v_add_u32 v7, {XROW}, v2')
e(f's_mov_b32 m0, {XB}')
e(f's_mov_b32 s{sPH}, 0')
if A.pfirst and not A.pmode: e('s_mov_b32 exec_hi, 1')
if A.pmode == 4:
    e(f's_cmp_lg_u32 s{sLOW}, 0'); e('s_cselect_b64 exec, -1, 1')
e('s_waitcnt lgkmcnt(0)')
stamp()
def wsrd():
    e(f's_sub_u32 s{sW}, s6, {WSH}'); e(f's_subb_u32 s{sW+1}, s7, 0'); e(f's_and_b32 s{sW+1}, s{sW+1}, 0xffff')
    if A.pmode in (0, 4):
        e(f'buffer_load_dword v4, v{vWP}, s[{sW}:{sW+3}], 0 offen')
        e('s_mov_b64 exec, -1')
if A.pfirst: wsrd()
e(f's_sub_u32 s{sX}, s4, {XSH}'); e(f's_subb_u32 s{sX+1}, s5, 0'); e(f's_and_b32 s{sX+1}, s{sX+1}, 0xffff')
def xrow(pace=0):
    for t in range(4):
        e(f'buffer_load_dwordx4 v{vXD[t]}, s[{sX}:{sX+3}], s{sSOF} offen offset:{1024*t} {A.ld} lds')
        if pace: e(f's_nop {pace-1}')
    e(f's_addk_i32 m0, {RS}')
    e(f's_add_u32 s{sSOF}, s{sSOF}, s{sSTEP}')
def xloop(name, end):
    lab(name)
    xrow(); xrow()
    e(f's_cmpk_lt_u32 m0, {XB+end*RS}')
    e(f's_cbranch_scc1 {name}')
if A.split:
    e(f's_cmp_eq_u32 s{sTYP}, {A.swap}')
    e('s_cbranch_scc1 L_pat')
if A.pmode == 2: e(f'buffer_load_dword v4, v{vWP}, s[{sW}:{sW+3}], 0 offen')
if A.xpf:
    if A.pmode == 4: e('s_mov_b32 exec_lo, 0x3fffffff'); e('s_mov_b32 exec_hi, exec_lo')
    e(f'buffer_load_dword v5, v7, s[{sX}:{sX+3}], s{sSOF} offen {A.ld}')
    if A.pmode == 4: e('s_mov_b64 exec, -1')
xloop('L_xa', 6)
if A.split:
    e(f's_cmp_eq_u32 s{sPH}, 0')
    e('s_cbranch_scc1 L_pat0')
    e(f's_mov_b32 m0, {WB + A.split*WS}')
    e('s_branch L_wl')
    lab('L_pat0')
    if A.xpf2:
        e(f's_cmp_lg_u32 s{sLOW}, 0')
        e(f's_cselect_b32 s3, 0, {8*XROW}')
        e(f's_add_u32 s3, s3, s{sSOF}')
        e(f'buffer_load_dword v5, v7, s[{sX}:{sX+3}], s3 offen {A.ld}')
    if A.pmode == 1: e(f'buffer_load_dword v4, v{vWP}, s[{sW}:{sW+3}], 0 offen')
    lab('L_pat')
    e(f's_mov_b32 s{sPH}, 1')
e(f's_movk_i32 s{sT1}, -24')
e(f's_movk_i32 s{sT2}, -46')
e(f's_movk_i32 s3, 171')
e('v_add_u32 v43, 32, v1')
e('v_mov_b32 v40, v1')
for ph in range(3):
    if ph: e('v_add_u32 v40, 64, v40')
    for x in ['v_mul_u32_u24 v42, s3, v40', 'v_lshrrev_b32 v42, 12, v42', f'v_mad_i32_i24 v41, v42, s{sT1}, v40',
        'v_lshrrev_b32 v42, 1, v41', 'v_add_u32 v42, v42, v41', f'v_mad_i32_i24 v51, v41, 3, s{sT2}', 'v_min_u32 v42, v42, v51',
        'v_sub_u32 v41, v43, v41', f'v_add_lshl_u32 v{vE[ph]}, v41, v42, 4', 'v_add_u32 v51, 12, v42', 'v_add_u32 v42, -12, v42',
        'v_min_u32 v42, v42, v51', f'v_add_lshl_u32 v{vOd[ph]}, v41, v42, 4']: e(x)
    if ph == 1: e('v_cmp_gt_u32 vcc, 32, v1')
e(f'v_cndmask_b32 v{vM}, v{vOd[1]}, v{vE[1]}, vcc')
e(f'v_cndmask_b32 v53, v52, v{vE[1]}, vcc')
e(f's_mov_b32 m0, {WB}')
e(f's_cmp_lg_u32 s{sLOW}, 0')
e(f's_cselect_b32 s{sWO}, 0, {4*WI}')
e(f's_cselect_b32 s{sNR}, {2*WI}, 0')
e(f's_sub_u32 s{sNR}, s{sNR}, {WI+5*4096}')
e(f's_mov_b32 s{sFL}, {FLG+32}')
wpat = [vE[0], vE[1], vE[2], vE[0], vM, vOd[2], vOd[0], vOd[1], vOd[2]]
def wblock(bar):
    for n in range(23):
        if n == A.bpos and bar:
            e(f's_sub_u32 s3, s{sXM}, s{sFL}')
            e('s_cmp_gt_u32 s3, 4')
            e('s_cbranch_scc1 L_wn')
            e(f's_waitcnt vmcnt({24+n})')
            e('s_barrier')
            if DIAG:
                e('s_cmp_eq_u32 s3, 4'); e('s_cbranch_scc1 L_wd1'); stamp(); e('s_branch L_wn'); lab('L_wd1'); stamp()
            lab('L_wn')
        e(f'buffer_load_dwordx4 v{wpat[n%9] if n < 22 else 53}, s[{sW}:{sW+3}], s{sWO} offen offset:{1024*(n%4)} {A.ldw} lds')
        if n % 4 == 3:
            e('s_addk_i32 m0, 4096')
            e(f's_addk_i32 s{sWO}, 4096')
    e(f's_add_u32 s3, m0, {WS-5*4096}')
    e(f's_mov_b32 m0, s{sFL}')
    e(f's_sub_u32 s{sFL}, s{sFL}, 4')
    e(f'buffer_load_dword v52, s[{sW}:{sW+3}], 0 offen lds')
    e('s_mov_b32 m0, s3')
    e(f's_add_u32 s{sWO}, s{sWO}, s{sNR}')
e(f's_cmp_lg_u32 s{sTYP}, {A.swap}')
e(f's_cselect_b32 s{sFM}, 0, {FLG+32-4*A.split if A.split else 0}')
e(f's_cselect_b32 s{sXM}, 4, {4*max(1,A.split)}')
e(f's_sub_u32 s{sXM}, s{sFL}, s{sXM}')
lab('L_wl')
wblock(True)
if A.split:
    e(f's_cmp_eq_u32 s{sFL}, s{sFM}')
    e(f's_cselect_b32 m0, {XB}, m0')
    e('s_cbranch_scc1 L_xa')
NLOOP = max(3, A.split+2)
e(f's_cmp_gt_u32 s{sFL}, {FLG+32-4*NLOOP}')
e('s_cbranch_scc1 L_wl')
for z in range(5-NLOOP): wblock(False)
e(f's_mov_b32 m0, {XB+6*RS}')
e('s_nop 0')
if A.xpf3:
    xrow(); xrow()
    e(f's_cmp_lg_u32 s{sLOW}, 0')
    e(f's_cselect_b32 s3, {13*XROW}, {2*XROW}') if False else None
    e(f's_cselect_b32 s3, 13, 2')
    e(f's_mul_i32 s3, s3, {XROW}')
    e(f's_sub_u32 s3, s{sSOF}, s3')
    for z in range(A.xpf3):
        e(f's_cbranch_scc1 L_never') if False else None
        e(f'buffer_load_dword v5, v7, s[{sX}:{sX+3}], s3 offen {A.ld}')
        if z+1 < A.xpf3: e(f's_sub_u32 s3, s3, {2*XROW}')
xloop('L_xb', 6+A.first)
issued = 6+A.first
nq = [0]
first = True
for need, rows, kind in bars[2:]:
    if kind == 'f': continue
    if not need:
        e('s_barrier'); stamp()
        continue
    if 'w4' in need: last = 5
    else:
        last = max(int(n[1:]) for n in need)
        quota = int(A.sched[nq[0]]) if (A.sched and nq[0] < len(A.sched)) else 9
        nq[0] += 1
        while issued < 17 and ((quota > 0) if A.sched else 4*(issued - last) <= (A.look2 if last > 6 else A.look6)):
            quota -= 1
            if issued == 14:
                e(f's_lshl_b32 s3, s{sLOW}, 3'); e(f's_cmp_eq_u32 s{sM}, s3'); e(f's_cselect_b32 s{sX+2}, 0, s{sX+2}')
            if issued == 16:
                e(f's_cmp_lg_u32 s{sTYP}, 0'); e(f's_cselect_b32 s{sX+2}, s{sX+2}, 0')
            xrow(A.pace)
            issued += 1
    cntv = 4*(issued - 1 - last) + (A.xpf3 if last < 8 else 0)
    e(f's_waitcnt vmcnt({cntv})')
    if cntv == 0 and issued == 17 and not DIAG: break
    e('s_barrier')
    stamp()
finish()

st_a = len(out)
nstamp[0] = st_common
lab('L_rolestore')
if A.pads:
    e('s_mov_b64 exec, 0')
    e(f's_cmp_eq_u32 s{sWAVE}, 2')
    e('s_cbranch_scc1 L_padc')
    e(f's_cmp_eq_u32 s{sWAVE}, 1')
    e('s_cbranch_scc1 L_padb')
lab('L_padret')
e('s_mov_b64 exec, -1')
vL16 = 5; vRA = 6; vSD = 8
tile_decode()
for x in rowcol_l(-1, 0): e(x)
e(f's_sub_u32 s3, s{sWAVE}, 1')
e('s_lshl_b32 s3, s3, 6')
e('v_add_u32 v2, s3, v1')
e(f'v_lshlrev_b32 v{vL16}, 4, v2')
e('v_mul_u32_u24 v3, 171, v2')
e('v_lshrrev_b32 v3, 11, v3')
e('v_add_u32 v2, v2, v3')
e(f'v_lshlrev_b32 v{vRA}, 4, v2')
e(f'v_add_u32 v{vRA}, {SB}, v{vRA}')
if A.stw < 4:
    W_ = A.stw; NJ = 4 // W_
    e('s_lshl_b32 s3, s3, 4')
    e(f'v_lshlrev_b32 v{vL16}, {1+W_}, v1')
    e(f'v_add_u32 v{vL16}, s3, v{vL16}')
    for j in range(NJ):
        e(f'v_add_u32 v2, {256*W_*j}, v{vL16}')
        e('v_lshrrev_b32 v3, 6, v2')
        e('v_mul_u32_u24 v3, 171, v3')
        e('v_lshrrev_b32 v3, 9, v3')
        e('v_lshl_add_u32 v2, v3, 4, v2')
        e(f'v_add_u32 v{60+j}, {SB}, v2')
e(f's_mov_b32 s{sO+3}, 0x20000'); e(f's_mov_b32 s{sO+2}, {XBYTES}')
e('s_waitcnt lgkmcnt(0)')
e(f's_mov_b32 s{sO}, s8'); e(f's_and_b32 s{sO+1}, s9, 0xffff')
stamp()
nb = 0
monn = [0]
sbars = []; held = []; npb = 0
for need, rows, kind in bars:
    if rows:
        npb += 1
        held = held + rows
        if npb <= A.dly: sbars.append((need, [], kind)); continue
        tk = held[:(int(A.spat[npb-1]) if A.spat else 4)] if (rows != [12] and rows != [10, 11]) else held
        assert len(tk) <= 4
        held = held[len(tk):]
        sbars.append((need, tk, kind))
    else: sbars.append((need, rows, kind))
assert not held
assert A.stw == 4
def st_rows(rows, d0):
    for n, o in enumerate(rows):
        e(f'ds_read_b128 v[{d0+4*n}:{d0+4*n+3}], v{vRA} offset:{o*SROW}')
    for n, o in enumerate(rows):
        e(f's_waitcnt lgkmcnt({len(rows)-1-n})')
        if o == 11:
            e(f's_cmp_eq_u32 s{sTYP}, 0'); e('s_cbranch_scc1 L_s12')
        e(f'buffer_store_dwordx4 v[{d0+4*n}:{d0+4*n+3}], v{vL16}, s[{sO}:{sO+3}], s{sSOF} offen {A.st}')
        e(f's_add_u32 s{sSOF}, s{sSOF}, s{sSTEP}')
        if o == 11:
            e(f'v_add_u32 v{vRA}, {SROW}, v{vRA}')
            lab('L_s12')
for need, rows, kind in sbars:
    if kind == 'f': continue
    e('s_barrier')
    if rows: stamp()
    if rows == [12]:
        e(f'ds_read_b128 v[{vSD+40}:{vSD+43}], v{vRA} offset:{11*SROW}')
        e('s_waitcnt lgkmcnt(0)')
        e(f'buffer_store_dwordx4 v[{vSD+40}:{vSD+43}], v{vL16}, s[{sO}:{sO+3}], s{sSOF} offen {A.st}')
    else: st_rows(rows, vSD + 16*(nb % 2))
    if rows: nb += 1
lab('L_fins')
finish()

storer_code = out[st_a:]; del out[st_a:]
nstamp[0] = st_common
out.append('.p2align 6')
lab('L_rolecomp')
vQ, vP = 2, 3
vXA = [4, 5, 6, 7]
vWL = [8, 9, 10]; vWH = [11, 20, 21]
vSL, vSH = 12, 13
vCV = 14
vT0, vT1, vT2, vT3 = 14, 15, 16, 17
vXF = 24
vAL = 40
vAH = 64
vWFL = 80
vWFH = 160
tile_decode()
e(f's_sub_u32 s{sG}, s{sWAVE}, 4')
if A.prio: e(f's_setprio {A.prio}')
e(f'v_lshrrev_b32 v{vQ}, 4, v1')
e(f'v_and_b32 v{vP}, 15, v1')
e(f's_mul_i32 s{sT1}, s{sG}, 3')
e(f'v_add_u32 v{vT0}, v{vP}, v{vQ}')
e(f'v_bfe_u32 v{vT1}, v{vT0}, 2, 2')
e(f'v_mul_u32_u24 v{vT0}, 192, v{vT0}')
for k in range(3):
    e(f's_add_u32 s3, s{sT1}, {k}')
    e(f'v_xor_b32 v{vT2}, s3, v{vT1}')
    e(f'v_lshl_add_u32 v{vXA[k]}, v{vT2}, 4, v{vT0}')
e(f'v_add_u32 v{vT0}, 4, v{vP}')
e(f'v_bfe_u32 v{vT1}, v{vT0}, 2, 2')
e(f'v_mul_u32_u24 v{vT0}, 192, v{vT0}')
e(f'v_add_u32 v{vT2}, s{sT1}, v{vQ}')
e(f'v_xor_b32 v{vT2}, v{vT2}, v{vT1}')
e(f'v_lshl_add_u32 v{vXA[3]}, v{vT2}, 4, v{vT0}')
e(f'v_cmp_eq_u32 vcc, 3, v{vQ}')
e(f'v_mov_b32 v{vT3}, {OOR}')
e(f's_mul_i32 s{sT0}, s{sG}, 1152')
e(f's_add_u32 s{sT0}, s{sT0}, {WB}')
e(f'v_cndmask_b32 v{vXA[3]}, v{vXA[3]}, v{vT3}, vcc')
e(f'v_mul_u32_u24 v{vT0}, 4608, v{vQ}')
e(f'v_add_u32 v{vT0}, s{sT0}, v{vT0}')
e(f'v_mul_u32_u24 v{vT1}, 384, v{vQ}')
e(f'v_cndmask_b32 v{vT1}, v{vT1}, v{vT3}, vcc')
e(f's_add_u32 s{sT0}, s{sT0}, {4*4608}')
e(f'v_add_u32 v{vT1}, s{sT0}, v{vT1}')
e(f'v_lshlrev_b32 v{vT2}, 3, v{vP}')
e(f'v_add_u32 v{vWL[2]}, v{vT1}, v{vT2}')
e(f'v_add_u32 v{vT2}, v{vT0}, v{vT2}')
e(f'v_and_b32 v18, 1, v{vQ}')
e(f'v_lshl_add_u32 v{vWL[0]}, v18, 7, v{vT2}')
e(f'v_xor_b32 v19, 1, v18')
e(f'v_lshl_add_u32 v{vWL[1]}, v19, 7, v{vT2}')
e(f'v_bfe_u32 v{vT2}, v1, 2, 2')
e(f'v_lshlrev_b32 v{vT2}, 4, v{vT2}')
e(f'v_and_b32 v22, 1, v1')
e(f'v_lshl_add_u32 v{vT2}, v22, 3, v{vT2}')
e(f'v_add_u32 v{vT2}, 256, v{vT2}')
e(f'v_bfe_u32 v22, v1, 1, 1')
e(f'v_mul_u32_u24 v23, {OOR}, v22')
e(f'v_add_u32 v{vT2}, v{vT2}, v23')
e(f'v_add_u32 v{vWH[2]}, v{vT1}, v{vT2}')
e(f'v_add_u32 v{vT2}, v{vT0}, v{vT2}')
e(f'v_lshl_add_u32 v{vWH[0]}, v18, 6, v{vT2}')
e(f'v_lshl_add_u32 v{vWH[1]}, v19, 6, v{vT2}')
e(f'v_mul_u32_u24 v18, {OOR+WS}, v22')
e(f'v_xor_b32 v22, 1, v22')
e(f'v_mul_u32_u24 v19, {OOR}, v22')
e(f'v_mov_b32 v22, {FLG}')
e(f'v_mul_u32_u24 v{vT0}, {SPX}, v{vP}')
e(f's_mul_i32 s{sT0}, s{sG}, 48')
e(f's_add_u32 s{sT0}, s{sT0}, {SB}')
e(f'v_add_u32 v{vT0}, s{sT0}, v{vT0}')
e(f'v_lshl_add_u32 v{vSL}, v{vQ}, 3, v{vT0}')
e(f'v_and_b32 v{vT1}, 1, v{vQ}')
e(f'v_lshl_add_u32 v{vSH}, v{vT1}, 3, v{vT0}')
e(f'v_lshrrev_b32 v{vT1}, 1, v{vQ}')
e(f'v_mul_u32_u24 v{vT1}, {SROW}, v{vT1}')
e(f'v_add3_u32 v{vSH}, v{vSH}, v{vT1}, 32')
e(f'v_sub_u32 v{vT0}, v19, v18')
e(f'v_add_u32 v{vT0}, {3*WS}, v{vT0}')
e(f'v_add_u32 v2, v{vT0}, v{vWH[0]}')
e(f'v_add_u32 v3, v{vT0}, v{vWH[1]}')
e(f'v_add_u32 v19, v{vT0}, v{vWH[2]}')
e('s_waitcnt lgkmcnt(0)')
stamp()
NFLAG = sum(1 for it in plan if it[0] == 'flag')
if NFLAG:
    e('s_mov_b32 s21, 0x40000')
    e(f's_cmp_eq_u32 s{sTYP}, 0')
    e('s_cbranch_scc1 L_go12')
    e('s_branch L_go13')
    for n0 in range(2*NFLAG):
        n = n0 % NFLAG + 1; sfx = f'{n}_{12 + n0//NFLAG}'
        lab(f'L_spin{sfx}')
        e('s_sub_u32 s21, s21, 1')
        e(f's_cbranch_scc1 L_back{sfx}')
        e(f'ds_read_b32 v23, v22 offset:{32-4*n}')
        e('s_waitcnt lgkmcnt(0)')
        e(f'v_cmp_eq_u32 vcc, 0, v23')
        e(f's_cbranch_vccz L_spin{sfx}')
        e(f's_branch L_back{sfx}')

def wl(i, k): return vWFL + (i*4+k)*4
def wh(i, k): return vWFH + (i*4+k)*4
def al(o): return vAL + 4*(o % 6)
def ah(u): return vAH + 4*(u % 4)
def bufreg(buf, k):
    if buf == 'x': return vXF + 4*k
    return (wl if buf[1] == 'l' else wh)(int(buf[2]), k)

def gen_compute(HH, plan0):
    M = []; F = []
    lastuse = {}
    lastacc = {}
    started = set()
    def add_mfma(kind, r, i, k, b):
        if kind == 'l': a = wl(i, k); c = al(r-i); key = ('l', r-i)
        else: a = wh(i, k); c = ah((r-i)//2); key = ('h', (r-i)//2)
        first = key not in started
        started.add(key)
        src = '0' if first else f'v[{c}:{c+3}]'
        M.append(dict(txt=f'v_mfma_f32_16x16x32_bf16 v[{c}:{c+3}], v[{a}:{a+3}], v[{b}:{b+3}], {src}', a=a, b=b, c=c, first=first, key=key))
        lastuse[a] = lastuse[b] = len(M)-1
        lastacc[key] = len(M)-1
    def fill(txt, lds=False, dst=None, after=-1, dist=0, bar=False, wr=False, frees=None):
        F.append(dict(txt=txt, lds=lds, dst=dst, after=after, dist=dist, bar=bar, wr=wr, frees=frees))
    def q_rdx(r, buf, k):
        d = bufreg(buf, k)
        fill(f'ds_read_b128 v[{d}:{d+3}], v{vXA[k]} offset:{r*RS}', lds=True, dst=d, after=lastuse.get(d, -1) + (A.rdlag if (buf == 'x' and r > first_steady and r < 14) else 0))
    wslot = {'l': 0, 'h': 0}
    def q_rdw(kind, i):
        regs = vWL if kind == 'l' else (vWH if i < 5 else [2, 3, 19])
        hs = 128 if kind == 'l' else 64
        base = (i % 3)*WS
        for k in range(4):
            d = (wl if kind == 'l' else wh)(i, k)
            for h in range(2):
                if k < 3: a = regs[h]; off = base + k*384
                else: a = regs[2]; off = base + h*hs
                fill(f'ds_read_b64_tr_b16 v[{d+2*h}:{d+2*h+1}], v{a} offset:{off}', lds=True, dst=(d if h == 1 else None), after=lastuse.get(d, -1))
        if i == 0 and kind == 'h':
            for a in regs: fill(f'v_sub_u32 v{a}, v{a}, v18')
        if i == 2:
            for a in regs: fill(f'v_add_u32 v{a}, {3*WS}, v{a}')
    cvn = [0]; queued = set()
    def q_out(kind, idx, final=False):
        key = (kind, idx); queued.add(key)
        c = al(idx) if kind == 'l' else ah(idx)
        t = vCV + 2*(cvn[0] % 2); cvn[0] += 1
        fill(f'v_cvt_pk_bf16_f32 v{t}, v{c}, v{c+1}', after=lastacc[key], dist=8)
        fill(f'v_cvt_pk_bf16_f32 v{t+1}, v{c+2}, v{c+3}', after=lastacc[key], dist=8, frees=c)
        a_, of = (vSL, idx*SROW) if kind == 'l' else (vSH, 2*idx*SROW)
        if A.w32 and not final:
            fill(f'ds_write_b32 v{a_}, v{t} offset:{of}', lds=True, wr=True)
            fill(f'ds_write_b32 v{a_}, v{t+1} offset:{of+4}', lds=True, wr=True)
        else: fill(f'ds_write_b64 v{a_}, v[{t}:{t+1}] offset:{of}', lds=True, wr=True)
    def q_bar(after, drain):
        fill('s_barrier', bar=True, after=after, wr=drain)
    done_units = set()
    pending_out = []
    def note_done(kind, r, i):
        done_units.add((kind, r, i))
        if kind == 'l':
            o = r-i
            if all(('l', o+t, t) in done_units for t in range(5)): pending_out.append(('l', o))
        else:
            u = (r-i)//2
            top = 6 if 2*u+1 < HH else 5
            if all(('h', 2*u+t, t) in done_units for t in range(top)): pending_out.append(('h', u))
    def done_now(kind, r, i, final=False):
        note_done(kind, r, i)
        for p in pending_out: q_out(*p, final=final)
        pending_out.clear()
    nfl = [0]; lastchk = [-1]; timed = {}
    plan = plan0 + (tail13 if HH == 13 else tail12)
    fillat = {}; npub = [0]
    for n, it in enumerate(plan):
        if it[0] == 'bar': q_bar(len(M)-1, None)
        elif it[0] == 'flag':
            nfl[0] += 1
            timed[max(len(M)-1-A.flead-A.chkgap, lastchk[0]+1)] = dict(txt=f'ds_read_b32 v23, v22 offset:{32-4*nfl[0]}', lds=True, dst='flag', after=-1, dist=0, bar=False, wr=False, frees=None)
            fill(nfl[0], bar='cmp', after=len(M)-1-A.chkgap)
            fill(nfl[0], bar='chk', after=len(M)-1)
            lastchk[0] = len(M)-1
        elif it[0] == 'rdx':
            for k in range(4): q_rdx(it[1], it[2], k)
        elif it[0] == 'rdw': q_rdw(it[1], it[2])
        elif it[0] == 'next': pass
        elif it[0] == 'fill': fillat[len(M)] = it[1]
        elif it[0] == 'pub':
            npub[0] += 1
            u = (3 if HH == 13 else 2) + npub[0]
            assert all(k in queued for k in (('l', 2*u), ('l', 2*u+1), ('h', u))), (u, queued)
            q_bar(len(M)-1+it[1], 'w')
        elif it[0] == 'pub1':
            assert ('l', it[1]) in queued and ('h', it[1]//2) in queued
            q_bar(len(M)-1, 'w')
        elif it[0] == 'ivisit':
            for (r, buf, kind, i) in it[1]:
                for k in range(4): add_mfma(kind, r, i, k, bufreg(buf, k))
                done_now(kind, r, i, n == len(plan)-1 and (r, buf, kind, i) == it[1][-1])
        elif it[0] == 'rdxm':
            for k in range(4):
                for r in it[1]: q_rdx(r, BUF[r], k)
        elif it[0] == 'mvisit':
            CH = A.chain if len(M) > 0 or A.chain0 else 1
            for k0 in range(0, 4, CH):
                for (r, buf, kind, i) in it[1]:
                    for k in range(k0, k0+CH): add_mfma(kind, r, i, k, bufreg(buf, k))
                    if k0+CH == 4: done_now(kind, r, i)
        else:
            if it[0] == 'visit': r, buf, U = it[1], it[2], it[3]
            else: r, buf, U = it[1], 'x', units(it[1], HH)
            nxt = [x for x in plan[n+1:] if x[0] != 'fill'][0]
            reload_row = nxt[1] if nxt[0] in ('steady', 'next') else None
            CH = A.chain; m0_ = len(M)
            for k0 in range(0, 4, CH):
                for (kind, i) in U:
                    for k in range(k0, k0+CH): add_mfma(kind, r, i, k, bufreg(buf, k))
                    if k0+CH == 4: done_now(kind, r, i)
                if k0 == 0 and it[0] == 'steady' and steady_bar(r):
                    u = (r-6)//2
                    assert all(k in queued for k in (('l', 2*u), ('l', 2*u+1), ('h', u))), (u, queued)
                    q_bar(min(len(M)-2, m0_+(13 if r < 6+2*A.dly or r < 8 or r % 2 else A.barpos)), 'w' if (steady_bar(r)[1] and (r-6)//2 >= A.dly) else None)
                if reload_row is not None:
                    for k in range(k0, k0+CH): q_rdx(reload_row, 'x', k)
    for p in pending_out: q_out(*p, final=True)
    q_bar(len(M)-1, 'w')
    assert len(M) == (424 if HH == 13 else 384), len(M)

    class T: issued = 0; done = 0; slot = 0; lastw = 0; t = 0; pipe = 0; ldsq = 0
    opready = {0: 0}
    LAT = A.lat
    regop = {}; mslot = {}; freed = set(); nbar = [0]
    def ee(s): e(s); T.slot += 1; T.t += 4
    def waitop(k):
        if k > T.done:
            n = min(14, T.issued - k)
            ee(f's_waitcnt lgkmcnt({n})'); T.done = T.issued - n
    fi = [0]
    def emit_f(mi):
        f = F[fi[0]]
        assert f['after'] < mi, (f, mi)
        if f['dist'] and f['after'] >= 0:
            gap = T.slot - mslot[f['after']] - 1
            if gap < f['dist']:
                e(f"s_nop {f['dist']-gap-1}"); T.slot += f['dist']-gap
        if f['bar'] == 'cmp':
            waitop(regop['flag'])
            ee("v_cmp_eq_u32 vcc, 0, v23")
        elif f['bar'] == 'chk':
            ee(f"s_cbranch_vccz L_spin{f['txt']}_{HH}")
            lab(f"L_back{f['txt']}_{HH}")
            if A.stamps == 'all': stamp()
        elif f['bar']:
            if f['wr']: waitop(T.lastw)
            ee('s_barrier')
            if f['after'] < 0: T.t = max(T.t, T.ldsq)
            if A.stamps == 'all' or str(nbar[0]) in A.stamps.split(','): stamp()
            nbar[0] += 1
        else:
            ee(f['txt'])
            if f['lds']:
                T.issued += 1
                T.ldsq = max(T.t + LAT, T.ldsq + (16 if 'b128' in f['txt'] else 8))
                opready[T.issued] = T.ldsq
                if f['dst'] is not None: regop[f['dst']] = T.issued
                if f['wr']: T.lastw = T.issued
            if f['frees'] is not None: freed.add(f['frees'])
        fi[0] += 1
    def promote(mi):
        j = fi[0]
        while j < len(F) and not F[j]['bar'] and isinstance(F[j]['txt'], str) and (F[j]['txt'].startswith('v_cvt') or F[j]['txt'].startswith('ds_write')): j += 1
        if j > fi[0] and j < len(F) and F[j]['after'] < mi and ((F[j]['bar'] is True and not F[j]['wr']) or (not F[j]['bar'] and F[j]['txt'].startswith('ds_read'))):
            F.insert(fi[0], F.pop(j))
    def ready(f, mi):
        if f['after'] >= mi: return False
        if f['bar'] is True and f['wr'] and opready[T.lastw] > T.t: return False
        if f['dist'] and f['after'] >= 0 and T.slot - mslot[f['after']] - 1 < f['dist']: return False
        return True
    prod = []
    accbusy = {}
    curfill = [1]
    for mi, m in enumerate(M):
        needidx = -1
        for j in range(fi[0], len(F)):
            if F[j]['after'] >= mi: break
            if F[j]['dst'] in (m['a'], m['b']): needidx = j
            if m['first'] and m['c'] in accbusy and F[j]['frees'] == m['c']: needidx = max(needidx, j)
        while fi[0] <= needidx: emit_f(mi)
        if m['first']:
            if m['c'] in accbusy: assert m['c'] in freed, m
            freed.discard(m['c']); accbusy[m['c']] = 1
        kop = max(regop.get(m['a'], 0), regop.get(m['b'], 0))
        while opready[kop] > T.t + 4 and fi[0] < len(F) and ready(F[fi[0]], mi) and not F[fi[0]]['bar'] and T.issued - kop < A.bcap and T.ldsq - T.t < A.qcap:
            emit_f(mi)
        waitop(kop)
        T.t = max(T.t, opready[kop], T.pipe)
        mslot[mi] = T.slot
        T.pipe = T.t + 16
        ee(m['txt']); T.t += 4
        nf = 0
        if mi in timed:
            F.insert(fi[0], timed[mi]); emit_f(mi+1); nf += 1
        if mi in fillat: curfill[0] = fillat[mi]
        promote(mi+1)
        while fi[0] < len(F) and nf < curfill[0] and ready(F[fi[0]], mi+1):
            emit_f(mi+1); nf += 1
            promote(mi+1)
        if nf == 0 and fi[0] < len(F) and A.nopfill:
            f = F[fi[0]]
            if f['dist'] and 0 <= f['after'] <= mi:
                needn = f['dist'] - (T.slot - mslot[f['after']] - 1) - 1
                if needn > 0:
                    k_ = min(2, needn); e(f's_nop {k_-1}'); T.slot += k_; T.t += 4*k_
    while fi[0] < len(F): emit_f(len(M))
    finish()

st0 = nstamp[0]
out.append('.p2align 12')
lab('L_go13')
gen_compute(13, planB if (A.split and A.swap) else plan)
nstamp[0] = st0
out.append('.p2align 6')
lab('L_go12')
gen_compute(12, planB if (A.split and not A.swap) else plan)

out.extend(storer_code)
if DIAG:
    lab('L_diag')
    e('s_getreg_b32 s3, hwreg(HW_REG_XCC_ID)')
    e('s_getreg_b32 s33, hwreg(HW_REG_HW_ID)')
    e('s_waitcnt lgkmcnt(0)')
    e('s_mov_b32 s12, s10'); e('s_and_b32 s13, s11, 0xffff'); e('s_mov_b32 s14, 0x100000'); e('s_mov_b32 s15, 0x20000')
    e(f's_mul_i32 s4, s2, 8'); e(f's_add_u32 s4, s4, s{sWAVE}'); e('s_lshl_b32 s4, s4, 8')
    regs = [3,33,36,37,38,39] + list(range(sSTAMP, sSTAMP+56))
    e('v_mov_b32 v2, 0')
    for j,rg in enumerate(regs):
        e(f'v_writelane_b32 v2, s{rg}, {j}')
    e('v_lshlrev_b32 v3, 2, v1')
    e('s_nop 4')
    e('buffer_store_dword v2, v3, s[12:15], s4 offen')
    e('s_waitcnt vmcnt(0)')
lab('L_end')
e('s_endpgm')
tail = '''.section .rodata,"a"
.p2align 6
.amdhsa_kernel standalone__grouped__vision_kernel
  .amdhsa_next_free_vgpr 256
  .amdhsa_next_free_sgpr 100
  .amdhsa_accum_offset 256
  .amdhsa_group_segment_fixed_size 0
  .amdhsa_kernarg_size 40
  .amdhsa_user_sgpr_count 2
  .amdhsa_user_sgpr_kernarg_segment_ptr 1
  .amdhsa_system_sgpr_workgroup_id_x 1
.end_amdhsa_kernel
'''
def isize(l):
    l = l.strip()
    if not l or l.endswith(':') or l.startswith('.'): return 0
    op = l.split()[0]
    if op.startswith(('v_mfma', 'ds_', 'v_cvt_pk', 's_memtime', 's_memrealtime')): return 8
    if op in ('s_waitcnt', 's_barrier', 's_nop', 's_cbranch_vccz', 's_cbranch_scc0', 's_cbranch_scc1', 's_cmp_ge_u32', 'v_cmp_eq_u32', 'v_sub_u32', 's_endpgm', 's_mov_b64', 's_branch'): return 4
    if op == 'v_add_u32': return 4 if l.split(',')[1].strip().startswith('v') else 8
    raise Exception(l)
g = out.index('L_go13:'); off = 0; nxt = 4096; names = ['L_padb', 'L_padc']
i = g+1
while names:
    if out[i] == '.p2align 6': off = (off + 63) // 64 * 64
    if off >= nxt:
        out[i:i] = [names.pop(0) + ':', '    s_cbranch_execz L_padret']
        nxt += 4096; off += 4; i += 2
        continue
    off += isize(out[i]); i += 1
print(hdr); print('\n'.join(out)); print(tail)
```

```python
import sys, argparse
ap = argparse.ArgumentParser()
ap.add_argument('--diag', action='store_true')
ap.add_argument('--stamps', default='all')
ap.add_argument('--st', default='sc0 sc1')
ap.add_argument('--ld', default='nt')
ap.add_argument('--ldw', default='')
ap.add_argument('--look', type=int, default=36)
ap.add_argument('--plan', default='E6')
ap.add_argument('--stl', default=None)
ap.add_argument('--look2', type=int, default=36)
ap.add_argument('--pre', default='')
ap.add_argument('--nocpf', action='store_true')
ap.add_argument('--pfirst', type=int, default=1)
ap.add_argument('--pads', type=int, default=1)
ap.add_argument('--padnop', type=int, default=0)
ap.add_argument('--bpos', type=int, default=12)
ap.add_argument('--split', type=int, default=1)
ap.add_argument('--swap', type=int, default=1)
ap.add_argument('--xpf', type=int, default=1)
ap.add_argument('--stw', type=int, default=4)
ap.add_argument('--w32', type=int, default=1)
ap.add_argument('--chkgap', type=int, default=2)
ap.add_argument('--qcap', type=int, default=130)
ap.add_argument('--lprio', type=int, default=3)
ap.add_argument('--bcap', type=int, default=6)
ap.add_argument('--nopfill', type=int, default=1)
ap.add_argument('--chain', type=int, default=2)
ap.add_argument('--chain0', type=int, default=0)
ap.add_argument('--barpos', type=int, default=5)
ap.add_argument('--b7', type=int, default=1)
ap.add_argument('--look6', type=int, default=0)
ap.add_argument('--dly', type=int, default=2)
ap.add_argument('--pmode', type=int, default=4)
ap.add_argument('--pace', type=int, default=0)
ap.add_argument('--sched', default='2430')
ap.add_argument('--xpf2', type=int, default=0)
ap.add_argument('--xpf3', type=int, default=0)
ap.add_argument('--first', type=int, default=2)
ap.add_argument('--spat', default='00044')
ap.add_argument('--mon', action='store_true')
ap.add_argument('--sync', default='fffffff')
ap.add_argument('--flead', type=int, default=4)
ap.add_argument('--prio', type=int, default=2)
ap.add_argument('--rdlag', type=int, default=1)
ap.add_argument('--maxfill', type=int, default=1)
ap.add_argument('--stream', default=None)
ap.add_argument('--rt', action='store_true')
ap.add_argument('--lat', type=int, default=70)
ap.add_argument('--rampfill', type=int, default=1)
A = ap.parse_args()
DIAG = A.diag
out = []
def e(s): out.append('    ' + s)
def lab(s): out.append(s + ':')

XROW = 43008; XBYTES = 224*XROW; WBYTES = 115200
WI = 23040; WS = 23168; RS = 3840
XB = 0
WB = 12*RS + 256
SB = WB + WS
FLG = WB + 5*WS + 384
SPX = 208; SROW = 16*SPX
OOR = 0x40000
LDS = FLG + 32 + 256
XSH = 2*XROW + 384
WSH = 512
assert WB % 256 == 0

sX, sW, sO = 12, 16, 20
sROW0, sCOL0, sSEG, sWAVE, sG, sT0, sT1, sT2 = 24, 25, 26, 27, 28, 29, 30, 31
sK = 32; sSOF = 33; sTYP = 34; sOB = 35
sSTAMP = 40
nstamp = [0]
def stamp():
    if DIAG:
        e(f"{'s_memrealtime' if A.rt else 's_memtime'} s[{sSTAMP+2*nstamp[0]}:{sSTAMP+2*nstamp[0]+1}]")
        nstamp[0] += 1
def finish():
    if DIAG:
        stamp()
        e('s_waitcnt vmcnt(0)')
        stamp()
        for z in range(nstamp[0], 28): e(f's_mov_b64 s[{sSTAMP+2*z}:{sSTAMP+2*z+1}], 0')
        e('s_memrealtime s[38:39]')
        e('s_branch L_diag')
    else:
        e('s_endpgm')

def L(*t): return [('l', i) for i in t]
def H(*t): return [('h', i) for i in t]
BUF = {0:'wh2', 1:'wh3', 2:'wl4', 3:'wh4', 4:'wh5', 5:'x'}
def mv(*u): return ('mvisit', [(r, BUF[r], k, t) for (k, r, t) in u])
def l(t, *rows): return [('l', r, t) for r in rows]
def h(t, *rows): return [('h', r, t) for r in rows]
def rdx(*rows): return [('rdx', r, BUF[r]) for r in rows]
if A.plan == 'E6':
    stream = ''
    rest = [
     mv(*l(1,1,2,3,4)),
     ('flag', ['w2'], []), ('rdw','l',2), ('rdw','h',2),
     mv(*h(1,1,3,5), *l(1,5)),
     mv(*l(2,2,3)),
     ('flag', ['w3'], []), ('rdw','l',3), ('rdw','h',3),
     mv(*h(2,2,4), *l(2,4,5)),
     mv(*l(3,3)),
     ('bar', ['w4'], []), ('rdw','l',4),
     mv(*h(3,3), *l(3,4)), ('rdw','h',4),
     mv(*l(3,5), *l(4,4)),
     mv(*h(4,4), *h(3,5)),
     ('rdw','h',5),
     ('bar', ['x6'], []),
     ('visit',5,'x',L(4)+H(5)),
    ]
    plan = [
     ('bar', ['x5'], []), *rdx(0,1,2,3,4,5),
     ('bar', ['w0'], []), ('rdw','l',0), ('rdw','h',0),
     mv(*l(0,0,1,2,3,4)), mv(*h(0,0,2)),
     ('flag', ['w1'], []), ('rdw','l',1), ('rdw','h',1),
     mv(*h(0,4), *l(0,5))] + rest
    planB = [('bar', ['w0'], []), ('rdw','l',0), ('rdw','h',0), ('bar', ['x5'], []), ('rdxm', [0,2,4]), ('rdxm', [1]), ('rdxm', [3,5]),
     mv(('l',0,0),('h',0,0),('l',2,0),('h',2,0),('l',4,0)), mv(*h(0,4), *l(0,1)),
     ('flag', ['w1'], []), ('rdw','l',1), ('rdw','h',1),
     mv(*l(0,3,5))] + rest
    first_steady = 6
elif A.plan == 'E5':
    stream = 'x0 x1 x2 x3 x4 p w0 w1 w2 w3 x5 w4 x6 x7 x8 x9 x10 x11 x12 x13 x14 x15 x16'
    plan = [
     ('bar', ['x4'], []), *rdx(0,1,2,3,4),
     ('bar', ['w0'], []), ('rdw','l',0), ('rdw','h',0),
     mv(*l(0,0,1,2,3,4)),
     ('flag', ['w1'], []), ('rdw','l',1), ('rdw','h',1),
     mv(*h(0,0,2,4)),
     mv(*l(1,1,2,3)),
     ('flag', ['w2'], []), ('rdw','l',2), ('rdw','h',2),
     mv(*h(1,1,3), *l(1,4)),
     mv(*l(2,2,3)),
     ('flag', ['w3'], []), ('rdw','l',3), ('rdw','h',3),
     mv(*h(2,2,4), *l(2,4)),
     mv(*l(3,3), *h(3,3)),
     ('flag', ['x5'], []), *rdx(5),
     mv(*l(3,4)),
     ('visit',5,'x',L(1,0)+H(1)),
     ('bar', ['w4','x6'], []), ('rdw','l',4), ('rdw','h',4),
     ('visit',5,'x',L(3,2)+H(3)),
     mv(*l(4,4), *h(4,4)),
     ('rdw','h',5),
     ('visit',5,'x',L(4)+H(5)),
    ]
    first_steady = 6
if A.pre: plan = [('bar', [t], []) for t in A.pre.split()] + plan
if A.stream: stream = A.stream
def units(r, HH=13):
    his = [('h', i) for i in range(5, -1, -1) if (r-i) % 2 == 0 and 0 <= r-i <= HH-1]
    los = [('l', i) for i in range(4, -1, -1) if 0 <= r-i <= HH-1]
    return los[:1] + his[:1] + los[1:] + his[1:]
for r in range(first_steady, 12):
    plan.append(('steady', r)); planB.append(('steady', r))
def mvb(B, *u): return ('mvisit', [(r, B[r], k, t) for (k, r, t) in u])
def ivb(B, *u): return ('ivisit', [(r, B[r], k, t) for (k, r, t) in u])
B13 = {13:'x', 14:'wl0', 15:'wh0', 16:'wh5'}
tail13 = [('steady', 12), ('next', 13),
     ('rdx',14,'wl0'), ('rdx',15,'wh0'),
     mvb(B13, ('l',13,4), ('h',13,5)),
     ('pub', 0),
     mvb(B13, ('l',13,3), ('l',13,2), ('h',13,3)),
     mvb(B13, ('l',14,4), ('l',14,3), ('h',14,4)),
     mvb(B13, ('h',15,5), ('l',15,4)), ('rdx',16,'wh5'),
     ('pub', 0),
     mvb(B13, ('l',13,1), ('h',13,1), ('l',14,2), ('h',14,2)),
     ivb(B13, ('l',15,3), ('l',16,4), ('h',15,3), ('h',16,4)),
]
B12 = {12:'x', 13:'wh0', 14:'wl0', 15:'wh1'}
tail12 = [('next', 12), ('pub', 0), ('rdx',13,'wh0'),
     mvb(B12, ('l',12,4), ('l',12,3), ('h',12,4)),
     ('rdx',14,'wl0'), ('rdx',15,'wh1'),
     mvb(B12, ('l',13,4), ('h',13,5)),
     ('pub', 0),
     mvb(B12, ('l',12,2), ('h',12,2), ('l',13,3), ('h',13,3)),
     ivb(B12, ('h',14,4), ('h',15,5), ('l',14,4)),
     ('pub1', 10),
     ivb(B12, ('l',12,1), ('l',13,2), ('l',14,3), ('l',15,4)),
]

hdr = f'''; grouped 5x5 conv, NHWC bf16, 224x224x96, G=4.  generated by dev/gen19.py
; @launch grid=(256,1,1) block=(512,1,1) lds={LDS}
.amdgcn_target "amdgcn-amd-amdhsa--gfx950"
.text
.p2align 12
.globl standalone__grouped__vision_kernel
.p2align 8
.type standalone__grouped__vision_kernel,@function
standalone__grouped__vision_kernel:'''

if DIAG: e('s_memrealtime s[36:37]')
stamp()
e('s_load_dwordx4 s[4:7], s[0:1], 0')
e('s_load_dwordx2 s[8:9], s[0:1], 16')
if DIAG: e('s_load_dwordx2 s[10:11], s[0:1], 32')
e('v_lshrrev_b32 v2, 6, v0')
e('v_and_b32 v1, 63, v0')
e(f'v_readfirstlane_b32 s{sWAVE}, v2')
e('s_and_b32 s3, s2, 7')
e(f's_lshr_b32 s{sK}, s2, 3')
e('s_lshl_b32 s3, s3, 5')
e(f's_add_u32 s{sT0}, s{sK}, s3')
e(f's_cmpk_ge_u32 s{sT0}, 252')
e('s_cbranch_scc1 L_end')
e(f's_cmp_ge_u32 s{sK}, 32')
e('s_cbranch_scc1 L_end')
e(f's_cmp_ge_u32 s{sWAVE}, 4')
e('s_cbranch_scc1 L_rolecomp')
e(f's_cmp_lg_u32 s{sWAVE}, 0')
e('s_cbranch_scc1 L_rolestore')
st_common = nstamp[0]
sM = sSEG; sLOW = sROW0; sSTEP = sG
def tile_decode_l():
    return [f's_and_b32 s{sLOW}, s{sT0}, 1',
    f's_cmpk_lt_u32 s{sT0}, 224',
    f's_cselect_b32 s{sTYP}, s{sLOW}, 0']
def tile_decode():
    for x in tile_decode_l(): e(x)
def rowcol_l(dup, dlow):
    return [f's_mul_i32 s{sM}, s{sT0}, 2341',
    f's_lshr_b32 s{sM}, s{sM}, 16',
    f's_mul_i32 s3, s{sM}, 28',
    f's_sub_u32 s{sCOL0}, s{sT0}, s3',
    f's_lshr_b32 s{sCOL0}, s{sCOL0}, 1',
    f's_mul_i32 s{sSOF}, s{sM}, 25',
    f's_cmp_lg_u32 s{sLOW}, 0',
    f's_cselect_b32 s3, {12+dlow}, {12+dup}',
    f's_cselect_b32 s{sSTEP}, 1, -1',
    f's_add_u32 s{sSOF}, s{sSOF}, s3',
    f's_mul_i32 s{sSOF}, s{sSOF}, 14',
    f's_add_u32 s{sSOF}, s{sSOF}, s{sCOL0}',
    f's_mulk_i32 s{sSOF}, 3072',
    f's_mul_i32 s{sSTEP}, s{sSTEP}, {XROW}']
def steady_bar(r):
    if r == 12: return (['x16'], [6, 7])
    if A.b7 == 2: return ([f'x{r+1}'], [r-6, r-5] if r % 2 == 0 else [])
    if A.b7 and r == 6: return (['x7'], [0, 1])
    if A.b7 and r == 7: return (['x8'], [])
    if r % 2 == 0:
        return ([f'x{q}' for q in (r+1, r+2) if q <= 16], [r-6, r-5])
    return None
bars = []
for it in plan:
    if it[0] == 'bar': bars.append((it[1], [], 'b'))
    elif it[0] == 'flag': bars.append((it[1], [], 'f'))
    elif it[0] == 'steady' and steady_bar(it[1]): bars.append(steady_bar(it[1]) + ('b',))
bars += [(['x16'], [6, 7], 'b'), ([], [8, 9], 'b'), ([], [10, 11], 'b'), ([], [12], 'b')]

lab('L_roleload')
if A.lprio: e(f's_setprio {A.lprio}')
e('s_getpc_b64 s[22:23]')
lab('L_pc')
if A.pmode >= 4:
    e(f's_bfe_u32 s{sT1}, s{sK}, 0x30001')
else: e(f's_and_b32 s{sT1}, s{sK}, 7')
e(f's_lshl_b32 s{sT1}, s{sT1}, 11')
e(f'v_lshl_add_u32 v3, v1, 7, s{sT1}')
e('v_min_u32 v3, L_end-L_pc, v3')
if A.pmode >= 4:
    e(f's_bitcmp1_b32 s{sK}, 0'); e('s_cselect_b32 exec_lo, 0xffff, 1'); e('s_mov_b32 exec_hi, 0')
else: e('s_mov_b64 exec, 0xffff')
e('global_load_dword v4, v3, s[22:23]' if not A.nocpf else 's_nop 0')
e('s_mov_b64 exec, -1')
vWP = 6
vXD = [8, 9, 10, 11]
vE = [44, 45, 46]; vOd = [47, 48, 49]; vM = 50
sWO = 23; sCNT = 22; sNR = 21; sXM = 20; sFM = 36 if not DIAG else 96; sPH = 37 if not DIAG else 97; sFL = 38 if not DIAG else 98
assert A.plan == 'E6'
tile_decode()
for x in rowcol_l(3, 0): e(x)
e(f's_cmp_eq_u32 s{sCOL0}, 0')
e(f's_cselect_b32 s{sT1}, 24, 0')
e(f's_cmp_eq_u32 s{sCOL0}, 13')
e(f's_cselect_b32 s{sT2}, 24, 48')
e(f'v_mov_b32 v54, {FLG}')
e('v_lshl_add_u32 v54, v1, 2, v54')
e('ds_write_b32 v54, v54')
e('v_bfrev_b32 v52, 1')
e(f'v_cmp_gt_u32 vcc, s{sT1}, v1')
e('v_add_u32 v2, 16, v1')
e('v_lshrrev_b32 v2, 6, v2')
e('v_xor_b32 v2, v2, v1')
e(f'v_lshlrev_b32 v{vXD[0]}, 4, v2')
e(f'v_cndmask_b32 v{vXD[0]}, v{vXD[0]}, v52, vcc')
e(f'v_cmp_le_u32 vcc, s{sT2}, v1')
e('v_lshrrev_b32 v2, 5, v1')
e('v_add_u32 v2, 1, v2')
e('v_xor_b32 v2, v2, v1')
e(f'v_lshlrev_b32 v{vXD[1]}, 4, v2')
e('v_add_u32 v2, 0xb0, v1')
e('v_lshrrev_b32 v2, 6, v2')
e('v_xor_b32 v2, v2, v1')
e(f'v_lshlrev_b32 v{vXD[2]}, 4, v2')
e(f'v_lshlrev_b32 v{vXD[3]}, 4, v1')
e(f'v_cndmask_b32 v{vXD[3]}, v{vXD[3]}, v52, vcc')
e(f's_mov_b32 s{sX+3}, 0x20000')
e(f's_mov_b32 s{sW+3}, 0x20000')
e(f's_mov_b32 s{sW+2}, {WBYTES+WSH}')
e(f's_mov_b32 s{sX+2}, {XBYTES+XSH}')
if A.pmode >= 5:
    NH, NT = (13, 52) if A.pmode == 5 else (26, 39)
    e(f's_lshr_b32 s{sT1}, s{sK}, 1')
    e(f's_cmp_lg_u32 s{sLOW}, 0')
    e(f's_cselect_b32 s3, {NH}, {NT}')
    e(f's_cselect_b32 s{sT2}, 0, {WI if A.pmode == 5 else 2*WI}')
    e(f's_mul_i32 s{sT1}, s{sT1}, s3')
    e(f's_lshl_b32 s{sT1}, s{sT1}, 7')
    e(f's_add_u32 s{sT1}, s{sT1}, s{sT2}')
elif A.pmode >= 1:
    e(f's_lshr_b32 s{sT1}, s{sK}, 1'); e(f's_lshl_b32 s{sT1}, s{sT1}, 13')
else: e(f's_mul_i32 s{sT1}, s{sK}, {33*128}')
e(f's_addk_i32 s{sT1}, {WSH}')
e(f'v_lshl_add_u32 v{vWP}, v1, 7, s{sT1}')
if A.xpf:
    e('v_lshrrev_b32 v2, 5, v1')
    e(f'v_mul_u32_u24 v2, {XROW-4096}, v2')
    e('v_lshl_add_u32 v2, v1, 7, v2')
    e(f'v_add_u32 v7, {XROW}, v2')
e(f's_mov_b32 m0, {XB}')
e(f's_mov_b32 s{sPH}, 0')
if A.pfirst and not A.pmode: e('s_mov_b32 exec_hi, 1')
if A.pmode >= 4:
    e(f's_cmp_lg_u32 s{sLOW}, 0')
    if A.pmode >= 5: e(f's_cselect_b32 exec_lo, {(1<<NH)-1}, 1'); e('s_mov_b32 exec_hi, 0')
    else: e('s_cselect_b64 exec, -1, 1')
e('s_waitcnt lgkmcnt(0)')
stamp()
def wsrd():
    e(f's_sub_u32 s{sW}, s6, {WSH}'); e(f's_subb_u32 s{sW+1}, s7, 0'); e(f's_and_b32 s{sW+1}, s{sW+1}, 0xffff')
    if A.pmode in (0, 4, 5, 6):
        e(f'buffer_load_dword v4, v{vWP}, s[{sW}:{sW+3}], 0 offen')
        e('s_mov_b64 exec, -1')
if A.pfirst: wsrd()
e(f's_sub_u32 s{sX}, s4, {XSH}'); e(f's_subb_u32 s{sX+1}, s5, 0'); e(f's_and_b32 s{sX+1}, s{sX+1}, 0xffff')
def xrow(pace=0):
    for t in range(4):
        e(f'buffer_load_dwordx4 v{vXD[t]}, s[{sX}:{sX+3}], s{sSOF} offen offset:{1024*t} {A.ld} lds')
        if pace: e(f's_nop {pace-1}')
    e(f's_addk_i32 m0, {RS}')
    e(f's_add_u32 s{sSOF}, s{sSOF}, s{sSTEP}')
def xloop(name, end):
    lab(name)
    xrow(); xrow()
    e(f's_cmpk_lt_u32 m0, {XB+end*RS}')
    e(f's_cbranch_scc1 {name}')
if A.split:
    e(f's_cmp_eq_u32 s{sTYP}, {A.swap}')
    e('s_cbranch_scc1 L_pat')
if A.pmode == 2: e(f'buffer_load_dword v4, v{vWP}, s[{sW}:{sW+3}], 0 offen')
if A.xpf:
    if A.pmode >= 4: e('s_mov_b32 exec_lo, 0x3fffffff'); e('s_mov_b32 exec_hi, exec_lo')
    e(f'buffer_load_dword v5, v7, s[{sX}:{sX+3}], s{sSOF} offen {A.ld}')
    if A.pmode >= 4: e('s_mov_b64 exec, -1')
xloop('L_xa', 6)
if A.split:
    e(f's_cmp_eq_u32 s{sPH}, 0')
    e('s_cbranch_scc1 L_pat0')
    e(f's_mov_b32 m0, {WB + A.split*WS}')
    e('s_branch L_wl')
    lab('L_pat0')
    if A.xpf2:
        e(f's_cmp_lg_u32 s{sLOW}, 0')
        e(f's_cselect_b32 s3, 0, {8*XROW}')
        e(f's_add_u32 s3, s3, s{sSOF}')
        e(f'buffer_load_dword v5, v7, s[{sX}:{sX+3}], s3 offen {A.ld}')
    if A.pmode == 1: e(f'buffer_load_dword v4, v{vWP}, s[{sW}:{sW+3}], 0 offen')
    if A.pmode >= 5:
        e(f's_mov_b32 exec_hi, {(1<<(NT-32))-1}'); e(f'buffer_load_dword v4, v{vWP}, s[{sW}:{sW+3}], 0 offen'); e('s_mov_b32 exec_hi, -1')
    lab('L_pat')
    e(f's_mov_b32 s{sPH}, 1')
e(f's_movk_i32 s{sT1}, -24')
e(f's_movk_i32 s{sT2}, -46')
e(f's_movk_i32 s3, 171')
e('v_add_u32 v43, 32, v1')
e('v_mov_b32 v40, v1')
for ph in range(3):
    if ph: e('v_add_u32 v40, 64, v40')
    for x in ['v_mul_u32_u24 v42, s3, v40', 'v_lshrrev_b32 v42, 12, v42', f'v_mad_i32_i24 v41, v42, s{sT1}, v40',
        'v_lshrrev_b32 v42, 1, v41', 'v_add_u32 v42, v42, v41', f'v_mad_i32_i24 v51, v41, 3, s{sT2}', 'v_min_u32 v42, v42, v51',
        'v_sub_u32 v41, v43, v41', f'v_add_lshl_u32 v{vE[ph]}, v41, v42, 4', 'v_add_u32 v51, 12, v42', 'v_add_u32 v42, -12, v42',
        'v_min_u32 v42, v42, v51', f'v_add_lshl_u32 v{vOd[ph]}, v41, v42, 4']: e(x)
    if ph == 1: e('v_cmp_gt_u32 vcc, 32, v1')
e(f'v_cndmask_b32 v{vM}, v{vOd[1]}, v{vE[1]}, vcc')
e(f'v_cndmask_b32 v53, v52, v{vE[1]}, vcc')
e(f's_mov_b32 m0, {WB}')
e(f's_cmp_lg_u32 s{sLOW}, 0')
e(f's_cselect_b32 s{sWO}, 0, {4*WI}')
e(f's_cselect_b32 s{sNR}, {2*WI}, 0')
e(f's_sub_u32 s{sNR}, s{sNR}, {WI+5*4096}')
e(f's_mov_b32 s{sFL}, {FLG+32}')
wpat = [vE[0], vE[1], vE[2], vE[0], vM, vOd[2], vOd[0], vOd[1], vOd[2]]
def wblock(bar):
    for n in range(23):
        if n == A.bpos and bar:
            e(f's_sub_u32 s3, s{sXM}, s{sFL}')
            e('s_cmp_gt_u32 s3, 4')
            e('s_cbranch_scc1 L_wn')
            e(f's_waitcnt vmcnt({24+n})')
            e('s_barrier')
            if DIAG:
                e('s_cmp_eq_u32 s3, 4'); e('s_cbranch_scc1 L_wd1'); stamp(); e('s_branch L_wn'); lab('L_wd1'); stamp()
            lab('L_wn')
        e(f'buffer_load_dwordx4 v{wpat[n%9] if n < 22 else 53}, s[{sW}:{sW+3}], s{sWO} offen offset:{1024*(n%4)} {A.ldw} lds')
        if n % 4 == 3:
            e('s_addk_i32 m0, 4096')
            e(f's_addk_i32 s{sWO}, 4096')
    e(f's_add_u32 s3, m0, {WS-5*4096}')
    e(f's_mov_b32 m0, s{sFL}')
    e(f's_sub_u32 s{sFL}, s{sFL}, 4')
    e(f'buffer_load_dword v52, s[{sW}:{sW+3}], 0 offen lds')
    e('s_mov_b32 m0, s3')
    e(f's_add_u32 s{sWO}, s{sWO}, s{sNR}')
e(f's_cmp_lg_u32 s{sTYP}, {A.swap}')
e(f's_cselect_b32 s{sFM}, 0, {FLG+32-4*A.split if A.split else 0}')
e(f's_cselect_b32 s{sXM}, 4, {4*max(1,A.split)}')
e(f's_sub_u32 s{sXM}, s{sFL}, s{sXM}')
lab('L_wl')
wblock(True)
if A.split:
    e(f's_cmp_eq_u32 s{sFL}, s{sFM}')
    e(f's_cselect_b32 m0, {XB}, m0')
    e('s_cbranch_scc1 L_xa')
NLOOP = max(3, A.split+2)
e(f's_cmp_gt_u32 s{sFL}, {FLG+32-4*NLOOP}')
e('s_cbranch_scc1 L_wl')
for z in range(5-NLOOP): wblock(False)
e(f's_mov_b32 m0, {XB+6*RS}')
e('s_nop 0')
if A.xpf3:
    xrow(); xrow()
    e(f's_cmp_lg_u32 s{sLOW}, 0')
    e(f's_cselect_b32 s3, {13*XROW}, {2*XROW}') if False else None
    e(f's_cselect_b32 s3, 13, 2')
    e(f's_mul_i32 s3, s3, {XROW}')
    e(f's_sub_u32 s3, s{sSOF}, s3')
    for z in range(A.xpf3):
        e(f's_cbranch_scc1 L_never') if False else None
        e(f'buffer_load_dword v5, v7, s[{sX}:{sX+3}], s3 offen {A.ld}')
        if z+1 < A.xpf3: e(f's_sub_u32 s3, s3, {2*XROW}')
for z in range(A.first): xrow()
issued = 6+A.first
nq = [0]
first = True
for need, rows, kind in bars[2:]:
    if kind == 'f': continue
    if not need:
        e('s_barrier'); stamp()
        continue
    if 'w4' in need: last = 5
    else:
        last = max(int(n[1:]) for n in need)
        quota = int(A.sched[nq[0]]) if (A.sched and nq[0] < len(A.sched)) else 9
        nq[0] += 1
        while issued < 17 and ((quota > 0) if A.sched else 4*(issued - last) <= (A.look2 if last > 6 else A.look6)):
            quota -= 1
            if issued == 14:
                e(f's_lshl_b32 s3, s{sLOW}, 3'); e(f's_cmp_eq_u32 s{sM}, s3'); e(f's_cselect_b32 s{sX+2}, 0, s{sX+2}')
            if issued == 16:
                e(f's_cmp_lg_u32 s{sTYP}, 0'); e(f's_cselect_b32 s{sX+2}, s{sX+2}, 0')
            xrow(A.pace)
            issued += 1
    cntv = 4*(issued - 1 - last) + (A.xpf3 if last < 8 else 0)
    e(f's_waitcnt vmcnt({cntv})')
    if cntv == 0 and issued == 17 and not DIAG: break
    e('s_barrier')
    stamp()
finish()

st_a = len(out)
nstamp[0] = st_common
lab('L_rolestore')
if A.pads:
    e('s_mov_b64 exec, 0')
    e(f's_cmp_eq_u32 s{sWAVE}, 2')
    e('s_cbranch_scc1 L_padc')
    e(f's_cmp_eq_u32 s{sWAVE}, 1')
    e('s_cbranch_scc1 L_padb')
lab('L_padret')
e('s_mov_b64 exec, -1')
vL16 = 5; vRA = 6; vSD = 8
tile_decode()
for x in rowcol_l(-1, 0): e(x)
e(f's_sub_u32 s3, s{sWAVE}, 1')
e('s_lshl_b32 s3, s3, 6')
e('v_add_u32 v2, s3, v1')
e(f'v_lshlrev_b32 v{vL16}, 4, v2')
e('v_mul_u32_u24 v3, 171, v2')
e('v_lshrrev_b32 v3, 11, v3')
e('v_add_u32 v2, v2, v3')
e(f'v_lshlrev_b32 v{vRA}, 4, v2')
e(f'v_add_u32 v{vRA}, {SB}, v{vRA}')
if A.stw < 4:
    W_ = A.stw; NJ = 4 // W_
    e('s_lshl_b32 s3, s3, 4')
    e(f'v_lshlrev_b32 v{vL16}, {1+W_}, v1')
    e(f'v_add_u32 v{vL16}, s3, v{vL16}')
    for j in range(NJ):
        e(f'v_add_u32 v2, {256*W_*j}, v{vL16}')
        e('v_lshrrev_b32 v3, 6, v2')
        e('v_mul_u32_u24 v3, 171, v3')
        e('v_lshrrev_b32 v3, 9, v3')
        e('v_lshl_add_u32 v2, v3, 4, v2')
        e(f'v_add_u32 v{60+j}, {SB}, v2')
e(f's_mov_b32 s{sO+3}, 0x20000'); e(f's_mov_b32 s{sO+2}, {XBYTES}')
e('s_waitcnt lgkmcnt(0)')
e(f's_mov_b32 s{sO}, s8'); e(f's_and_b32 s{sO+1}, s9, 0xffff')
stamp()
nb = 0
monn = [0]
sbars = []; held = []; npb = 0; started_ = False; ns_ = 0
for need, rows, kind in bars:
    if rows: started_ = True
    if not started_ or kind == 'f':
        sbars.append((need, rows, kind)); continue
    if rows:
        npb += 1
        pend_ = rows if npb > A.dly else []
        if npb <= A.dly: unpub = (unpub if npb > 1 else []) + rows
        else:
            held = held + (unpub if npb == A.dly+1 and A.dly else []) + rows
    q_ = int(A.spat[ns_]) if ns_ < len(A.spat) else 9
    ns_ += 1
    tk = held[:q_]; held = held[len(tk):]
    assert len(tk) <= 4 and (11 not in tk or tk[-1] == 11 and rows == [10, 11]), (tk, rows)
    sbars.append((need, tk, kind))
assert not held
assert A.stw == 4
def st_rows(rows, d0):
    for n, o in enumerate(rows):
        e(f'ds_read_b128 v[{d0+4*n}:{d0+4*n+3}], v{vRA} offset:{o*SROW}')
    for n, o in enumerate(rows):
        e(f's_waitcnt lgkmcnt({len(rows)-1-n})')
        if o == 11:
            e(f's_cmp_eq_u32 s{sTYP}, 0'); e('s_cbranch_scc1 L_s12')
        e(f'buffer_store_dwordx4 v[{d0+4*n}:{d0+4*n+3}], v{vL16}, s[{sO}:{sO+3}], s{sSOF} offen {A.st}')
        e(f's_add_u32 s{sSOF}, s{sSOF}, s{sSTEP}')
        if o == 11:
            e(f'v_add_u32 v{vRA}, {SROW}, v{vRA}')
            lab('L_s12')
for need, rows, kind in sbars:
    if kind == 'f': continue
    e('s_barrier')
    if rows: stamp()
    if rows == [12]:
        e(f'ds_read_b128 v[{vSD+40}:{vSD+43}], v{vRA} offset:{11*SROW}')
        e('s_waitcnt lgkmcnt(0)')
        e(f'buffer_store_dwordx4 v[{vSD+40}:{vSD+43}], v{vL16}, s[{sO}:{sO+3}], s{sSOF} offen {A.st if A.stl is None else A.stl}')
    else: st_rows(rows, vSD + 16*(nb % 2))
    if rows: nb += 1
lab('L_fins')
finish()

storer_code = out[st_a:]; del out[st_a:]
nstamp[0] = st_common
out.append('.p2align 6')
lab('L_rolecomp')
vQ, vP = 2, 3
vXA = [4, 5, 6, 7]
vWL = [8, 9, 10]; vWH = [11, 20, 21]
vSL, vSH = 12, 13
vCV = 14
vT0, vT1, vT2, vT3 = 14, 15, 16, 17
vXF = 24
vAL = 40
vAH = 64
vWFL = 80
vWFH = 160
tile_decode()
e(f's_sub_u32 s{sG}, s{sWAVE}, 4')
if A.prio: e(f's_setprio {A.prio}')
e(f'v_lshrrev_b32 v{vQ}, 4, v1')
e(f'v_and_b32 v{vP}, 15, v1')
e(f's_mul_i32 s{sT1}, s{sG}, 3')
e(f'v_add_u32 v{vT0}, v{vP}, v{vQ}')
e(f'v_bfe_u32 v{vT1}, v{vT0}, 2, 2')
e(f'v_mul_u32_u24 v{vT0}, 192, v{vT0}')
for k in range(3):
    e(f's_add_u32 s3, s{sT1}, {k}')
    e(f'v_xor_b32 v{vT2}, s3, v{vT1}')
    e(f'v_lshl_add_u32 v{vXA[k]}, v{vT2}, 4, v{vT0}')
e(f'v_add_u32 v{vT0}, 4, v{vP}')
e(f'v_bfe_u32 v{vT1}, v{vT0}, 2, 2')
e(f'v_mul_u32_u24 v{vT0}, 192, v{vT0}')
e(f'v_add_u32 v{vT2}, s{sT1}, v{vQ}')
e(f'v_xor_b32 v{vT2}, v{vT2}, v{vT1}')
e(f'v_lshl_add_u32 v{vXA[3]}, v{vT2}, 4, v{vT0}')
e(f'v_cmp_eq_u32 vcc, 3, v{vQ}')
e(f'v_mov_b32 v{vT3}, {OOR}')
e(f's_mul_i32 s{sT0}, s{sG}, 1152')
e(f's_add_u32 s{sT0}, s{sT0}, {WB}')
e(f'v_cndmask_b32 v{vXA[3]}, v{vXA[3]}, v{vT3}, vcc')
e(f'v_mul_u32_u24 v{vT0}, 4608, v{vQ}')
e(f'v_add_u32 v{vT0}, s{sT0}, v{vT0}')
e(f'v_mul_u32_u24 v{vT1}, 384, v{vQ}')
e(f'v_cndmask_b32 v{vT1}, v{vT1}, v{vT3}, vcc')
e(f's_add_u32 s{sT0}, s{sT0}, {4*4608}')
e(f'v_add_u32 v{vT1}, s{sT0}, v{vT1}')
e(f'v_lshlrev_b32 v{vT2}, 3, v{vP}')
e(f'v_add_u32 v{vWL[2]}, v{vT1}, v{vT2}')
e(f'v_add_u32 v{vT2}, v{vT0}, v{vT2}')
e(f'v_and_b32 v18, 1, v{vQ}')
e(f'v_lshl_add_u32 v{vWL[0]}, v18, 7, v{vT2}')
e(f'v_xor_b32 v19, 1, v18')
e(f'v_lshl_add_u32 v{vWL[1]}, v19, 7, v{vT2}')
e(f'v_bfe_u32 v{vT2}, v1, 2, 2')
e(f'v_lshlrev_b32 v{vT2}, 4, v{vT2}')
e(f'v_and_b32 v22, 1, v1')
e(f'v_lshl_add_u32 v{vT2}, v22, 3, v{vT2}')
e(f'v_add_u32 v{vT2}, 256, v{vT2}')
e(f'v_bfe_u32 v22, v1, 1, 1')
e(f'v_mul_u32_u24 v23, {OOR}, v22')
e(f'v_add_u32 v{vT2}, v{vT2}, v23')
e(f'v_add_u32 v{vWH[2]}, v{vT1}, v{vT2}')
e(f'v_add_u32 v{vT2}, v{vT0}, v{vT2}')
e(f'v_lshl_add_u32 v{vWH[0]}, v18, 6, v{vT2}')
e(f'v_lshl_add_u32 v{vWH[1]}, v19, 6, v{vT2}')
e(f'v_mul_u32_u24 v18, {OOR+WS}, v22')
e(f'v_xor_b32 v22, 1, v22')
e(f'v_mul_u32_u24 v19, {OOR}, v22')
e(f'v_mov_b32 v22, {FLG}')
e(f'v_mul_u32_u24 v{vT0}, {SPX}, v{vP}')
e(f's_mul_i32 s{sT0}, s{sG}, 48')
e(f's_add_u32 s{sT0}, s{sT0}, {SB}')
e(f'v_add_u32 v{vT0}, s{sT0}, v{vT0}')
e(f'v_lshl_add_u32 v{vSL}, v{vQ}, 3, v{vT0}')
e(f'v_and_b32 v{vT1}, 1, v{vQ}')
e(f'v_lshl_add_u32 v{vSH}, v{vT1}, 3, v{vT0}')
e(f'v_lshrrev_b32 v{vT1}, 1, v{vQ}')
e(f'v_mul_u32_u24 v{vT1}, {SROW}, v{vT1}')
e(f'v_add3_u32 v{vSH}, v{vSH}, v{vT1}, 32')
e(f'v_sub_u32 v{vT0}, v19, v18')
e(f'v_add_u32 v{vT0}, {3*WS}, v{vT0}')
e(f'v_add_u32 v2, v{vT0}, v{vWH[0]}')
e(f'v_add_u32 v3, v{vT0}, v{vWH[1]}')
e(f'v_add_u32 v19, v{vT0}, v{vWH[2]}')
e('s_waitcnt lgkmcnt(0)')
stamp()
NFLAG = sum(1 for it in plan if it[0] == 'flag')
if NFLAG:
    e('s_mov_b32 s21, 0x40000')
    e(f's_cmp_eq_u32 s{sTYP}, 0')
    e('s_cbranch_scc1 L_go12')
    e('s_branch L_go13')
    for n0 in range(2*NFLAG):
        n = n0 % NFLAG + 1; sfx = f'{n}_{12 + n0//NFLAG}'
        lab(f'L_spin{sfx}')
        e('s_sub_u32 s21, s21, 1')
        e(f's_cbranch_scc1 L_back{sfx}')
        e(f'ds_read_b32 v23, v22 offset:{32-4*n}')
        e('s_waitcnt lgkmcnt(0)')
        e(f'v_cmp_eq_u32 vcc, 0, v23')
        e(f's_cbranch_vccz L_spin{sfx}')
        e(f's_branch L_back{sfx}')

def wl(i, k): return vWFL + (i*4+k)*4
def wh(i, k): return vWFH + (i*4+k)*4
def al(o): return vAL + 4*(o % 6)
def ah(u): return vAH + 4*(u % 4)
def bufreg(buf, k):
    if buf == 'x': return vXF + 4*k
    return (wl if buf[1] == 'l' else wh)(int(buf[2]), k)

def gen_compute(HH, plan0):
    M = []; F = []
    lastuse = {}
    lastacc = {}
    started = set()
    def add_mfma(kind, r, i, k, b):
        if kind == 'l': a = wl(i, k); c = al(r-i); key = ('l', r-i)
        else: a = wh(i, k); c = ah((r-i)//2); key = ('h', (r-i)//2)
        first = key not in started
        started.add(key)
        src = '0' if first else f'v[{c}:{c+3}]'
        M.append(dict(txt=f'v_mfma_f32_16x16x32_bf16 v[{c}:{c+3}], v[{a}:{a+3}], v[{b}:{b+3}], {src}', a=a, b=b, c=c, first=first, key=key))
        lastuse[a] = lastuse[b] = len(M)-1
        lastacc[key] = len(M)-1
    def fill(txt, lds=False, dst=None, after=-1, dist=0, bar=False, wr=False, frees=None):
        F.append(dict(txt=txt, lds=lds, dst=dst, after=after, dist=dist, bar=bar, wr=wr, frees=frees))
    def q_rdx(r, buf, k):
        d = bufreg(buf, k)
        fill(f'ds_read_b128 v[{d}:{d+3}], v{vXA[k]} offset:{r*RS}', lds=True, dst=d, after=lastuse.get(d, -1) + (A.rdlag if (buf == 'x' and r > first_steady and r < 14) else 0))
    wslot = {'l': 0, 'h': 0}
    def q_rdw(kind, i):
        regs = vWL if kind == 'l' else (vWH if i < 5 else [2, 3, 19])
        hs = 128 if kind == 'l' else 64
        base = (i % 3)*WS
        for k in range(4):
            d = (wl if kind == 'l' else wh)(i, k)
            for h in range(2):
                if k < 3: a = regs[h]; off = base + k*384
                else: a = regs[2]; off = base + h*hs
                fill(f'ds_read_b64_tr_b16 v[{d+2*h}:{d+2*h+1}], v{a} offset:{off}', lds=True, dst=(d if h == 1 else None), after=lastuse.get(d, -1))
        if i == 0 and kind == 'h':
            for a in regs: fill(f'v_sub_u32 v{a}, v{a}, v18')
        if i == 2:
            for a in regs: fill(f'v_add_u32 v{a}, {3*WS}, v{a}')
    cvn = [0]; queued = set()
    def q_out(kind, idx, final=False):
        key = (kind, idx); queued.add(key)
        c = al(idx) if kind == 'l' else ah(idx)
        t = vCV + 2*(cvn[0] % 2); cvn[0] += 1
        fill(f'v_cvt_pk_bf16_f32 v{t}, v{c}, v{c+1}', after=lastacc[key], dist=8)
        fill(f'v_cvt_pk_bf16_f32 v{t+1}, v{c+2}, v{c+3}', after=lastacc[key], dist=8, frees=c)
        a_, of = (vSL, idx*SROW) if kind == 'l' else (vSH, 2*idx*SROW)
        if A.w32 and not final:
            fill(f'ds_write_b32 v{a_}, v{t} offset:{of}', lds=True, wr=True)
            fill(f'ds_write_b32 v{a_}, v{t+1} offset:{of+4}', lds=True, wr=True)
        else: fill(f'ds_write_b64 v{a_}, v[{t}:{t+1}] offset:{of}', lds=True, wr=True)
    def q_bar(after, drain):
        fill('s_barrier', bar=True, after=after, wr=drain)
    done_units = set()
    pending_out = []
    def note_done(kind, r, i):
        done_units.add((kind, r, i))
        if kind == 'l':
            o = r-i
            if all(('l', o+t, t) in done_units for t in range(5)): pending_out.append(('l', o))
        else:
            u = (r-i)//2
            top = 6 if 2*u+1 < HH else 5
            if all(('h', 2*u+t, t) in done_units for t in range(top)): pending_out.append(('h', u))
    def done_now(kind, r, i, final=False):
        note_done(kind, r, i)
        for p in pending_out: q_out(*p, final=final)
        pending_out.clear()
    nfl = [0]; lastchk = [-1]; timed = {}
    plan = plan0 + (tail13 if HH == 13 else tail12)
    fillat = {}; npub = [0]
    for n, it in enumerate(plan):
        if it[0] == 'bar': q_bar(len(M)-1, None)
        elif it[0] == 'flag':
            nfl[0] += 1
            timed[max(len(M)-1-A.flead-A.chkgap, lastchk[0]+1)] = dict(txt=f'ds_read_b32 v23, v22 offset:{32-4*nfl[0]}', lds=True, dst='flag', after=-1, dist=0, bar=False, wr=False, frees=None)
            fill(nfl[0], bar='cmp', after=len(M)-1-A.chkgap)
            fill(nfl[0], bar='chk', after=len(M)-1)
            lastchk[0] = len(M)-1
        elif it[0] == 'rdx':
            for k in range(4): q_rdx(it[1], it[2], k)
        elif it[0] == 'rdw': q_rdw(it[1], it[2])
        elif it[0] == 'next': pass
        elif it[0] == 'fill': fillat[len(M)] = it[1]
        elif it[0] == 'pub':
            npub[0] += 1
            u = (3 if HH == 13 else 2) + npub[0]
            assert all(k in queued for k in (('l', 2*u), ('l', 2*u+1), ('h', u))), (u, queued)
            q_bar(len(M)-1+it[1], 'w')
        elif it[0] == 'pub1':
            assert ('l', it[1]) in queued and ('h', it[1]//2) in queued
            q_bar(len(M)-1, 'w')
        elif it[0] == 'ivisit':
            for (r, buf, kind, i) in it[1]:
                for k in range(4): add_mfma(kind, r, i, k, bufreg(buf, k))
                done_now(kind, r, i, n == len(plan)-1 and (r, buf, kind, i) == it[1][-1])
        elif it[0] == 'rdxm':
            for k in range(4):
                for r in it[1]: q_rdx(r, BUF[r], k)
        elif it[0] == 'mvisit':
            CH = A.chain if len(M) > 0 or A.chain0 else 1
            for k0 in range(0, 4, CH):
                for (r, buf, kind, i) in it[1]:
                    for k in range(k0, k0+CH): add_mfma(kind, r, i, k, bufreg(buf, k))
                    if k0+CH == 4: done_now(kind, r, i)
        else:
            if it[0] == 'visit': r, buf, U = it[1], it[2], it[3]
            else: r, buf, U = it[1], 'x', units(it[1], HH)
            nxt = [x for x in plan[n+1:] if x[0] != 'fill'][0]
            reload_row = nxt[1] if nxt[0] in ('steady', 'next') else None
            CH = A.chain; m0_ = len(M)
            for k0 in range(0, 4, CH):
                for (kind, i) in U:
                    for k in range(k0, k0+CH): add_mfma(kind, r, i, k, bufreg(buf, k))
                    if k0+CH == 4: done_now(kind, r, i)
                if k0 == 0 and it[0] == 'steady' and steady_bar(r):
                    u = (r-6)//2
                    assert all(k in queued for k in (('l', 2*u), ('l', 2*u+1), ('h', u))), (u, queued)
                    q_bar(min(len(M)-2, m0_+(13 if r < 6+2*A.dly or r < 8 or r % 2 else A.barpos)), 'w' if (steady_bar(r)[1] and (r-6)//2 >= A.dly) else None)
                if reload_row is not None:
                    for k in range(k0, k0+CH): q_rdx(reload_row, 'x', k)
    for p in pending_out: q_out(*p, final=True)
    q_bar(len(M)-1, 'w')
    assert len(M) == (424 if HH == 13 else 384), len(M)

    class T: issued = 0; done = 0; slot = 0; lastw = 0; t = 0; pipe = 0; ldsq = 0
    opready = {0: 0}
    LAT = A.lat
    regop = {}; mslot = {}; freed = set(); nbar = [0]
    def ee(s): e(s); T.slot += 1; T.t += 4
    def waitop(k):
        if k > T.done:
            n = min(14, T.issued - k)
            ee(f's_waitcnt lgkmcnt({n})'); T.done = T.issued - n
    fi = [0]
    def emit_f(mi):
        f = F[fi[0]]
        assert f['after'] < mi, (f, mi)
        if f['dist'] and f['after'] >= 0:
            gap = T.slot - mslot[f['after']] - 1
            if gap < f['dist']:
                e(f"s_nop {f['dist']-gap-1}"); T.slot += f['dist']-gap
        if f['bar'] == 'cmp':
            waitop(regop['flag'])
            ee("v_cmp_eq_u32 vcc, 0, v23")
        elif f['bar'] == 'chk':
            ee(f"s_cbranch_vccz L_spin{f['txt']}_{HH}")
            lab(f"L_back{f['txt']}_{HH}")
            if A.stamps == 'all': stamp()
        elif f['bar']:
            if f['wr']: waitop(T.lastw)
            ee('s_barrier')
            if f['after'] < 0: T.t = max(T.t, T.ldsq)
            if A.stamps == 'all' or str(nbar[0]) in A.stamps.split(','): stamp()
            nbar[0] += 1
        else:
            ee(f['txt'])
            if f['lds']:
                T.issued += 1
                T.ldsq = max(T.t + LAT, T.ldsq + (16 if 'b128' in f['txt'] else 8))
                opready[T.issued] = T.ldsq
                if f['dst'] is not None: regop[f['dst']] = T.issued
                if f['wr']: T.lastw = T.issued
            if f['frees'] is not None: freed.add(f['frees'])
        fi[0] += 1
    def promote(mi):
        j = fi[0]
        while j < len(F) and not F[j]['bar'] and isinstance(F[j]['txt'], str) and (F[j]['txt'].startswith('v_cvt') or F[j]['txt'].startswith('ds_write')): j += 1
        if j > fi[0] and j < len(F) and F[j]['after'] < mi and ((F[j]['bar'] is True and not F[j]['wr']) or (not F[j]['bar'] and F[j]['txt'].startswith('ds_read'))):
            F.insert(fi[0], F.pop(j))
    def ready(f, mi):
        if f['after'] >= mi: return False
        if f['bar'] is True and f['wr'] and opready[T.lastw] > T.t: return False
        if f['dist'] and f['after'] >= 0 and T.slot - mslot[f['after']] - 1 < f['dist']: return False
        return True
    prod = []
    accbusy = {}
    curfill = [1]
    for mi, m in enumerate(M):
        needidx = -1
        for j in range(fi[0], len(F)):
            if F[j]['after'] >= mi: break
            if F[j]['dst'] in (m['a'], m['b']): needidx = j
            if m['first'] and m['c'] in accbusy and F[j]['frees'] == m['c']: needidx = max(needidx, j)
        while fi[0] <= needidx: emit_f(mi)
        if m['first']:
            if m['c'] in accbusy: assert m['c'] in freed, m
            freed.discard(m['c']); accbusy[m['c']] = 1
        kop = max(regop.get(m['a'], 0), regop.get(m['b'], 0))
        while opready[kop] > T.t + 4 and fi[0] < len(F) and ready(F[fi[0]], mi) and not F[fi[0]]['bar'] and T.issued - kop < A.bcap and T.ldsq - T.t < A.qcap:
            emit_f(mi)
        waitop(kop)
        T.t = max(T.t, opready[kop], T.pipe)
        mslot[mi] = T.slot
        T.pipe = T.t + 16
        ee(m['txt']); T.t += 4
        nf = 0
        if mi in timed:
            F.insert(fi[0], timed[mi]); emit_f(mi+1); nf += 1
        if mi in fillat: curfill[0] = fillat[mi]
        promote(mi+1)
        while fi[0] < len(F) and nf < curfill[0] and ready(F[fi[0]], mi+1):
            emit_f(mi+1); nf += 1
            promote(mi+1)
        if nf == 0 and fi[0] < len(F) and A.nopfill:
            f = F[fi[0]]
            if f['dist'] and 0 <= f['after'] <= mi:
                needn = f['dist'] - (T.slot - mslot[f['after']] - 1) - 1
                if needn > 0:
                    k_ = min(2, needn); e(f's_nop {k_-1}'); T.slot += k_; T.t += 4*k_
    while fi[0] < len(F): emit_f(len(M))
    finish()

st0 = nstamp[0]
out.append('.p2align 12')
lab('L_go13')
gen_compute(13, planB if (A.split and A.swap) else plan)
nstamp[0] = st0
out.append('.p2align 6')
lab('L_go12')
gen_compute(12, planB if (A.split and not A.swap) else plan)

out.extend(storer_code)
if DIAG:
    lab('L_diag')
    e('s_getreg_b32 s3, hwreg(HW_REG_XCC_ID)')
    e('s_getreg_b32 s33, hwreg(HW_REG_HW_ID)')
    e('s_waitcnt lgkmcnt(0)')
    e('s_mov_b32 s12, s10'); e('s_and_b32 s13, s11, 0xffff'); e('s_mov_b32 s14, 0x100000'); e('s_mov_b32 s15, 0x20000')
    e(f's_mul_i32 s4, s2, 8'); e(f's_add_u32 s4, s4, s{sWAVE}'); e('s_lshl_b32 s4, s4, 8')
    regs = [3,33,36,37,38,39] + list(range(sSTAMP, sSTAMP+56))
    e('v_mov_b32 v2, 0')
    for j,rg in enumerate(regs):
        e(f'v_writelane_b32 v2, s{rg}, {j}')
    e('v_lshlrev_b32 v3, 2, v1')
    e('s_nop 4')
    e('buffer_store_dword v2, v3, s[12:15], s4 offen')
    e('s_waitcnt vmcnt(0)')
lab('L_end')
e('s_endpgm')
tail = '''.section .rodata,"a"
.p2align 6
.amdhsa_kernel standalone__grouped__vision_kernel
  .amdhsa_next_free_vgpr 256
  .amdhsa_next_free_sgpr 100
  .amdhsa_accum_offset 256
  .amdhsa_group_segment_fixed_size 0
  .amdhsa_kernarg_size 40
  .amdhsa_user_sgpr_count 2
  .amdhsa_user_sgpr_kernarg_segment_ptr 1
  .amdhsa_system_sgpr_workgroup_id_x 1
.end_amdhsa_kernel
'''
def isize(l):
    l = l.strip()
    if not l or l.endswith(':') or l.startswith('.'): return 0
    op = l.split()[0]
    if op.startswith(('v_mfma', 'ds_', 'v_cvt_pk', 's_memtime', 's_memrealtime')): return 8
    if op in ('s_waitcnt', 's_barrier', 's_nop', 's_cbranch_vccz', 's_cbranch_scc0', 's_cbranch_scc1', 's_cmp_ge_u32', 'v_cmp_eq_u32', 'v_sub_u32', 's_endpgm', 's_mov_b64', 's_branch'): return 4
    if op == 'v_add_u32': return 4 if l.split(',')[1].strip().startswith('v') else 8
    raise Exception(l)
g = out.index('L_go13:'); off = 0; nxt = 4096; names = ['L_padb', 'L_padc']
i = g+1
while names:
    if out[i] == '.p2align 6': off = (off + 63) // 64 * 64
    if off >= nxt:
        out[i:i] = [names.pop(0) + ':', '    s_cbranch_execz L_padret']
        nxt += 4096; off += 4; i += 2
        continue
    off += isize(out[i]); i += 1
print(hdr); print('\n'.join(out)); print(tail)
```
